```python
import torch

def _softmax(x, axis=-1):
    return torch.softmax(x, dim=axis)
def _gelu(x):
    return torch.nn.functional.gelu(x, approximate="tanh")
def _silu(x):
    return torch.nn.functional.silu(x)
def _sigmoid(x):
    return torch.sigmoid(x)
def _layernorm(x, axis=-1, eps=1e-5):
    m = x.mean(dim=axis, keepdim=True)
    v = x.var(dim=axis, keepdim=True, unbiased=False)
    return (x - m) / torch.sqrt(v + eps)
def _scatter_add(tgt, idx, src, axis=0):
    return tgt.clone().index_add_(axis, idx, src)
def _segment_sum(src, seg, n):
    out = torch.zeros((n,) + src.shape[1:], dtype=src.dtype)
    return out.index_add_(0, seg, src)
def _pad(x, pw):
    flat = tuple(v for pair in reversed(pw) for v in pair)
    return torch.nn.functional.pad(x, flat)

kernel_name = 'recurrent_scan__spectral_gfnet__swiglu_ffn__prompt'

def setup_inputs():

    _w = (lambda a: (lambda t: t.to(torch.bfloat16) if t.is_floating_point() else t)(torch.as_tensor(a)))
    def _A_setup():
        B, S, D = 1, 2048, 512
        Df = D // 2 + 1
        return {
            "x": _w((lambda *s: torch.randn(*s, dtype=torch.bfloat16) * 0.05)(B, S, D)),
            "w_r": _w((lambda *s: torch.randn(*s, dtype=torch.bfloat16) * 0.1)(S, Df) * 0.02),
            "w_i": _w((lambda *s: torch.randn(*s, dtype=torch.bfloat16) * 0.1)(S, Df) * 0.02),
        }
    _A_in = _A_setup()

    def _B_setup():
        B, S, D, F = 1, 2048, 512, 1792
        return {
            "x": _w((lambda *s: torch.randn(*s, dtype=torch.bfloat16) * 0.05)(B, S, D)),
            "w_gate": _w((lambda *s: torch.randn(*s, dtype=torch.bfloat16) * 0.05)(D, F)),
            "w_up": _w((lambda *s: torch.randn(*s, dtype=torch.bfloat16) * 0.05)(D, F)),
            "w_down": _w((lambda *s: torch.randn(*s, dtype=torch.bfloat16) * 0.05)(F, D)),
        }
    _B_in = _B_setup()

    return {
        "A_x": _A_in["x"],
        "A_w_r": _A_in["w_r"],
        "A_w_i": _A_in["w_i"],
        "B_x": _B_in["x"],
        "B_w_gate": _B_in["w_gate"],
        "B_w_up": _B_in["w_up"],
        "B_w_down": _B_in["w_down"],
    }

def reference(A_x, A_w_r, A_w_i, B_x, B_w_gate, B_w_up, B_w_down):
    def _A_ref(x, w_r, w_i):
        B, S, D = x.shape
        X = (lambda x, axes=(-2,-1): torch.fft.rfft2(x.float(), dim=axes))(x, axes=(-2, -1))
        W = w_r + 1j * w_i
        X = X * W
        y = (lambda x, s, axes=(-2,-1): torch.fft.irfft2(x, s=s, dim=axes).to(torch.bfloat16))(X, (S, D), axes=(-2, -1))
        return y

    def _B_ref(x, w_gate, w_up, w_down):
        g = _silu(x @ w_gate)
        u = x @ w_up
        return (g * u) @ w_down

    x = A_x
    xn = _layernorm(x, axis=-1)
    s = _A_ref(xn, A_w_r, A_w_i)
    g = _silu(_B_ref(xn, B_w_gate, B_w_up, B_w_down))
    return x + s * g
```

```python
import math

class Asm:
    def __init__(self):
        self.l = []
    def __call__(self, s):
        self.l.append("    " + s)
    def label(self, s):
        self.l.append(s + ":")
    def comment(self, s):
        self.l.append("    ; " + s)
    def trans(self, s):
        self(s); self("s_nop 0")
    def text(self):
        return "\n".join(self.l) + "\n"

class Pool:
    def __init__(self, start, npairs):
        assert start % 2 == 0
        self.free = [start + 2 * i for i in range(npairs)]
    def alloc(self):
        return self.free.pop(0)
    def release(self, p):
        assert p not in self.free
        self.free.append(p)

def CV(p, sw=0, sr=1, si=1):
    return dict(p=p, sw=sw, sr=sr, si=si)
def re_op(x, neg=False):
    s = x['sr'] * (-1 if neg else 1)
    return ("-" if s < 0 else "") + "v%d" % (x['p'] + x['sw'])
def im_op(x, neg=False):
    s = x['si'] * (-1 if neg else 1)
    return ("-" if s < 0 else "") + "v%d" % (x['p'] + 1 - x['sw'])

def cadd(a, pool, x, y, sub=False, free=()):
    z = pool.alloc()
    a("v_add_f32 v%d, %s, %s" % (z, re_op(x), re_op(y, sub)))
    a("v_add_f32 v%d, %s, %s" % (z + 1, im_op(x), im_op(y, sub)))
    for f in free:
        pool.release(f['p'])
    return CV(z)

def bfly(a, pool, x, y):
    s = cadd(a, pool, x, y)
    d = cadd(a, pool, x, y, sub=True, free=(x, y))
    return s, d

def mul_i(x, sgn):
    return dict(p=x['p'], sw=1 - x['sw'], sr=-sgn * x['si'], si=sgn * x['sr'])

def mul_w8(a, pool, x, sgn, k, sc):
    z = pool.alloc()
    neg = (k == 3)
    a("v_add_f32 v%d, %s, %s" % (z, re_op(x, neg), im_op(x, sgn > 0)))
    a("v_add_f32 v%d, %s, %s" % (z + 1, im_op(x, neg), re_op(x, sgn < 0)))
    a("v_mul_f32 v%d, %s, v%d" % (z, sc, z))
    a("v_mul_f32 v%d, %s, v%d" % (z + 1, sc, z + 1))
    pool.release(x['p'])
    return CV(z)

def dft4(a, pool, v, sgn):
    t0, t1 = bfly(a, pool, v[0], v[2])
    t2, t3 = bfly(a, pool, v[1], v[3])
    t3 = mul_i(t3, sgn)
    y0, y2 = bfly(a, pool, t0, t2)
    y1, y3 = bfly(a, pool, t1, t3)
    return [y0, y1, y2, y3]

def dft8(a, pool, v, sgn, sc):
    e = [None] * 4; o = [None] * 4
    for n in range(4):
        e[n], o[n] = bfly(a, pool, v[n], v[n + 4])
    o[1] = mul_w8(a, pool, o[1], sgn, 1, sc)
    o[2] = mul_i(o[2], sgn)
    o[3] = mul_w8(a, pool, o[3], sgn, 3, sc)
    E = dft4(a, pool, e, sgn)
    O = dft4(a, pool, o, sgn)
    return [E[0], O[0], E[1], O[1], E[2], O[2], E[3], O[3]]

def twiddle(a, pool, x, wr, wi, conj=False):
    z = pool.alloc()
    if not conj:
        a("v_mul_f32 v%d, %s, v%d" % (z, re_op(x), wr))
        a("v_fma_f32 v%d, %s, v%d, v%d" % (z, im_op(x, True), wi, z))
        a("v_mul_f32 v%d, %s, v%d" % (z + 1, re_op(x), wi))
        a("v_fma_f32 v%d, %s, v%d, v%d" % (z + 1, im_op(x), wr, z + 1))
    else:
        a("v_mul_f32 v%d, %s, v%d" % (z, re_op(x), wr))
        a("v_fma_f32 v%d, %s, v%d, v%d" % (z, im_op(x), wi, z))
        a("v_mul_f32 v%d, %s, v%d" % (z + 1, im_op(x), wr))
        a("v_fma_f32 v%d, %s, v%d, v%d" % (z + 1, re_op(x, True), wi, z + 1))
    pool.release(x['p'])
    return CV(z)

def plain(x):
    return x['sw'] == 0 and x['sr'] == 1 and x['si'] == 1

def gen_twiddles(a, vidx, N, ks, dst, tmp, sN_inv_lit):
    for k in ks:
        wr, wi = dst[k]
        if k == 1:
            a("v_and_b32 v%d, %d, v%d" % (tmp, N - 1, vidx))
        else:
            a("v_mul_u32_u24 v%d, %d, v%d" % (tmp, k, vidx))
            a("v_and_b32 v%d, %d, v%d" % (tmp, N - 1, tmp))
        a("v_cvt_f32_u32 v%d, v%d" % (tmp, tmp))
        a("v_mul_f32 v%d, %s, v%d" % (tmp, sN_inv_lit, tmp))
        a("v_cos_f32 v%d, v%d" % (wr, tmp))
        a("v_sin_f32 v%d, v%d" % (wi, tmp))
    a("s_nop 0")

def fhex(x):
    import struct
    return "0x%08x" % struct.unpack("<I", struct.pack("<f", x))[0]

KD = """.section .rodata,"a"
.p2align 6
.amdhsa_kernel {name}
  .amdhsa_next_free_vgpr {vgpr}
  .amdhsa_next_free_sgpr 102
  .amdhsa_accum_offset {accum}
  .amdhsa_group_segment_fixed_size 0
  .amdhsa_kernarg_size 80
  .amdhsa_user_sgpr_count 2
  .amdhsa_user_sgpr_kernarg_segment_ptr 1
  .amdhsa_system_sgpr_workgroup_id_x 1
.end_amdhsa_kernel
"""

def kernel_text(name, body, vgpr=256):
    accum = (vgpr + 3) // 4 * 4
    s = ".text\n.globl %s\n.p2align 8\n.type %s,@function\n%s:\n" % (name, name, name)
    s += body
    s += "s_endpgm\n"
    s += KD.format(name=name, vgpr=vgpr, accum=accum)
    return s

def srd(a, sbase, sptr, off, nbytes):
    if off:
        a("s_add_u32 s%d, s%d, 0x%x" % (sbase, sptr, off))
        a("s_addc_u32 s%d, s%d, 0" % (sbase + 1, sptr + 1))
    else:
        a("s_mov_b32 s%d, s%d" % (sbase, sptr))
        a("s_mov_b32 s%d, s%d" % (sbase + 1, sptr + 1))
    a("s_mov_b32 s%d, 0x%x" % (sbase + 2, nbytes))
    a("s_mov_b32 s%d, 0x00020000" % (sbase + 3))
```

```python
from asmlib import *
from layout import *

def gen_wprep(a, L, wg_expr="s2"):
    a("s_load_dwordx4 s[36:39], s[0:1], 8")
    a("v_and_b32 v1, 63, v0")
    a("v_lshrrev_b32 v2, 6, v0")
    a("s_nop 0")
    a("v_readfirstlane_b32 s8, v2")
    a("s_lshl_b32 s9, s3, 2")
    a("s_add_u32 s9, s9, s8")
    a("s_and_b32 s10, s9, 255")
    a("s_lshr_b32 s11, s9, 8")
    a("s_lshl_b32 s11, s11, 6")
    a("v_add_u32 v2, s11, v1")
    a("s_waitcnt lgkmcnt(0)")
    srd(a, 12, 36, 0, S * DF * 2)
    srd(a, 16, 38, 0, S * DF * 2)
    srd(a, 20, 6, WS_WT, DF * S * 4)
    a("s_lshr_b32 s24, s10, 2")
    a("s_and_b32 s25, s10, 3")
    a("s_lshl_b32 s25, s25, 6")
    a("s_add_u32 s24, s24, s25")
    a("v_lshlrev_b32 v3, 1, v2")
    for e in range(8):
        c, q4 = e >> 2, e & 3
        a("s_add_u32 s26, s24, %d" % (256 * c + 512 * q4))
        a("s_mul_i32 s%d, s26, 514" % (40 + e))
        a("buffer_load_ushort v%d, v3, s[12:15], s%d offen" % (8 + e, 40 + e))
        a("buffer_load_ushort v%d, v3, s[16:19], s%d offen" % (16 + e, 40 + e))
    a("v_lshlrev_b32 v4, 13, v2")
    a("s_lshl_b32 s27, s10, 5")
    a("s_waitcnt vmcnt(0)")
    for e in range(8):
        a("v_lshl_or_b32 v%d, v%d, 16, v%d" % (8 + e, 16 + e, 8 + e))
    a("v_cmp_gt_u32 vcc, %d, v2" % DF)
    a("s_and_saveexec_b64 s[34:35], vcc")
    a("buffer_store_dwordx4 v[8:11], v4, s[20:23], s27 offen")
    a("buffer_store_dwordx4 v[12:15], v4, s[20:23], s27 offen offset:16")
    a("s_mov_b64 exec, s[34:35]")

def gen_colfft(a, L):
    srd(a, 12, 6, WS_X1T, X1T_BYTES)
    srd(a, 16, 6, WS_WT, DF * S * 4)
    a("s_lshl_b32 s9, s3, 14")
    a("v_lshlrev_b32 v2, 3, v0")
    pool = Pool(104, 24)
    vals = []
    for m in range(8):
        p = pool.alloc(); vals.append(CV(p))
        a("s_add_u32 s%d, s9, %d" % (40 + m, 2048 * m))
        a("buffer_load_dwordx2 v[%d:%d], v2, s[12:15], s%d offen" % (p, p + 1, 40 + m))
    a("s_lshl_b32 s10, s3, 13")
    a("v_lshlrev_b32 v3, 5, v0")
    a("buffer_load_dwordx4 v[82:85], v3, s[16:19], s10 offen")
    a("buffer_load_dwordx4 v[86:89], v3, s[16:19], s10 offen offset:16")
    a("s_mov_b32 s26, %s" % fhex(math.sqrt(0.5)))
    SC = "s26"
    T1 = {q: (40 + 2 * (q - 1), 41 + 2 * (q - 1)) for q in range(1, 8)}
    T2 = {q: (54 + 2 * (q - 1), 55 + 2 * (q - 1)) for q in range(1, 8)}
    T3 = {q: (68 + 2 * (q - 1), 69 + 2 * (q - 1)) for q in range(1, 8)}
    gen_twiddles(a, 0, 2048, range(1, 8), T1, 12, fhex(-1.0 / 2048))
    a("v_and_b32 v13, 31, v0")
    gen_twiddles(a, 13, 256, range(1, 8), T2, 12, fhex(-1.0 / 256))
    a("v_and_b32 v14, 3, v0")
    gen_twiddles(a, 14, 32, range(1, 8), T3, 12, fhex(-1.0 / 32))
    RB = 18432
    a("v_lshrrev_b32 v15, 5, v0")
    a("v_lshlrev_b32 v4, 11, v15")
    a("v_lshlrev_b32 v12, 3, v13")
    a("v_add_u32 v4, v4, v12")
    a("v_mul_u32_u24 v5, 288, v15")
    a("v_add_u32 v5, v5, v12")
    a("v_lshrrev_b32 v15, 2, v0")
    a("v_mul_u32_u24 v6, 288, v15")
    a("v_lshlrev_b32 v12, 3, v14")
    a("v_add_u32 v6, v6, v12")
    a("v_mul_u32_u24 v7, 2056, v14")
    a("v_lshlrev_b32 v12, 5, v15")
    a("v_add_u32 v7, v7, v12")
    def wr(vaddr, x, off):
        assert plain(x)
        a("ds_write_b64 %s, v[%d:%d] offset:%d" % (vaddr, x['p'], x['p'] + 1, off))
    def rd(vaddr, off):
        p = pool.alloc()
        a("ds_read_b64 v[%d:%d], %s offset:%d" % (p, p + 1, vaddr, off))
        return CV(p)
    def sync():
        a("s_waitcnt lgkmcnt(0)"); a("s_barrier")
    a("s_waitcnt vmcnt(2)")
    y = dft8(a, pool, vals, -1, SC)
    for q in range(1, 8): y[q] = twiddle(a, pool, y[q], *T1[q])
    for q in range(8): wr("v2", y[q], 2048 * q)
    for q in range(8): pool.release(y[q]['p'])
    sync()
    vals = [rd("v4", 256 * m) for m in range(8)]
    a("s_waitcnt lgkmcnt(0)")
    y = dft8(a, pool, vals, -1, SC)
    for q in range(1, 8): y[q] = twiddle(a, pool, y[q], *T2[q])
    for q in range(8): wr("v5", y[q], RB + 2304 * q)
    for q in range(8): pool.release(y[q]['p'])
    sync()
    vals = [rd("v6", RB + 32 * m) for m in range(8)]
    a("s_waitcnt lgkmcnt(0)")
    y = dft8(a, pool, vals, -1, SC)
    for q in range(1, 8): y[q] = twiddle(a, pool, y[q], *T3[q])
    for q in range(8): wr("v2", y[q], 2056 * q)
    for q in range(8): pool.release(y[q]['p'])
    sync()
    vals = [[rd("v7", 4 * 2056 * c + 8 * v) for v in range(4)] for c in range(2)]
    a("s_waitcnt lgkmcnt(0)")
    y4 = [dft4(a, pool, vals[c], -1) for c in range(2)]
    a("s_waitcnt vmcnt(0)")
    for c in range(2):
        for q4 in range(4):
            e = 4 * c + q4
            a("v_lshlrev_b32 v12, 16, v%d" % (82 + e))
            a("v_and_b32 v13, 0xffff0000, v%d" % (82 + e))
            y4[c][q4] = twiddle(a, pool, y4[c][q4], 12, 13)
    z = [dft4(a, pool, y4[c], +1) for c in range(2)]
    for c in range(2):
        for v in range(4): wr("v7", z[c][v], RB + 4 * 2056 * c + 8 * v)
        for v in range(4): pool.release(z[c][v]['p'])
    sync()
    vals = [rd("v2", RB + 2056 * q) for q in range(8)]
    a("s_waitcnt lgkmcnt(0)")
    for q in range(1, 8): vals[q] = twiddle(a, pool, vals[q], *T3[q], conj=True)
    y = dft8(a, pool, vals, +1, SC)
    for m in range(8): wr("v6", y[m], 32 * m)
    for m in range(8): pool.release(y[m]['p'])
    sync()
    vals = [rd("v5", 2304 * q) for q in range(8)]
    a("s_waitcnt lgkmcnt(0)")
    for q in range(1, 8): vals[q] = twiddle(a, pool, vals[q], *T2[q], conj=True)
    y = dft8(a, pool, vals, +1, SC)
    for m in range(8): wr("v4", y[m], RB + 256 * m)
    for m in range(8): pool.release(y[m]['p'])
    sync()
    vals = [rd("v2", RB + 2048 * q) for q in range(8)]
    a("s_waitcnt lgkmcnt(0)")
    for q in range(1, 8): vals[q] = twiddle(a, pool, vals[q], *T1[q], conj=True)
    y = dft8(a, pool, vals, +1, SC)
    for m in range(8):
        assert plain(y[m])
        a("buffer_store_dwordx2 v[%d:%d], v2, s[12:15], s%d offen" % (y[m]['p'], y[m]['p'] + 1, 40 + m))
```

```python
from asmlib import *
from layout import *

LOG2E = 1.4426950408889634

def mainloop(a, cfg):
    KT, KS, STAGE = cfg['KT'], cfg['KS'], cfg['STAGE']
    NW, NX = cfg['NW'], cfg['NX']
    def reads(stage, kbl, s):
        for i in range(NW):
            r = cfg['fw'](s, i)
            a("ds_read_b128 v[%d:%d], v%d offset:%d" % (r, r + 3, cfg['vW'], stage * STAGE + cfg['woff'](kbl, i)))
        for j in range(NX):
            r = cfg['fx'](s, j)
            a("ds_read_b128 v[%d:%d], v%d offset:%d" % (r, r + 3, cfg['vX'], stage * STAGE + cfg['xoff'](kbl, j)))
    cfg['dma'](0, 0)
    a("s_waitcnt vmcnt(0)")
    a("s_barrier")
    first = True
    for t in range(KT):
        st = t & 1
        if t + 1 < KT:
            cfg['dma'](t + 1, (t + 1) & 1)
        reads(st, 0, 0)
        for kbl in range(KS):
            s = kbl & 1
            if kbl + 1 < KS:
                reads(st, kbl + 1, (kbl + 1) & 1)
                a("s_waitcnt lgkmcnt(%d)" % (NW + NX))
            else:
                a("s_waitcnt lgkmcnt(0)")
            for i in range(NW):
                for j in range(NX):
                    ac = cfg['acc'](i, j)
                    w = cfg['fw'](s, i); x = cfg['fx'](s, j)
                    src = "0" if first else "v[%d:%d]" % (ac, ac + 15)
                    a("v_mfma_f32_32x32x16_bf16 v[%d:%d], v[%d:%d], v[%d:%d], %s" % (ac, ac + 15, w, w + 3, x, x + 3, src))
            first = False
        if t + 1 < KT:
            a("s_waitcnt vmcnt(0)")
            a("s_barrier")

def bf16r_pair(a, x0, x1, t):
    a("v_cvt_pk_bf16_f32 v%d, v%d, v%d" % (t, x0, x1))
    a("v_lshlrev_b32 v%d, 16, v%d" % (x0, t))
    a("v_and_b32 v%d, 0xffff0000, v%d" % (x1, t))

def silu_pair(a, x0, x1, t0, t1):
    a("v_mul_f32 v%d, s44, v%d" % (t0, x0)); a("v_mul_f32 v%d, s44, v%d" % (t1, x1))
    a("v_exp_f32 v%d, v%d" % (t0, t0)); a("v_exp_f32 v%d, v%d" % (t1, t1)); a("s_nop 0")
    a("v_add_f32 v%d, 1.0, v%d" % (t0, t0)); a("v_add_f32 v%d, 1.0, v%d" % (t1, t1))
    a("v_rcp_f32 v%d, v%d" % (t0, t0)); a("v_rcp_f32 v%d, v%d" % (t1, t1)); a("s_nop 0")
    a("v_mul_f32 v%d, v%d, v%d" % (x0, x0, t0)); a("v_mul_f32 v%d, v%d, v%d" % (x1, x1, t1))

def gen_gemm1(a, L):
    a("v_and_b32 v1, 63, v0")
    a("v_lshrrev_b32 v2, 6, v0")
    a("s_nop 0")
    a("v_readfirstlane_b32 s8, v2")
    a("s_and_b32 s9, s3, 15")
    a("s_lshr_b32 s10, s3, 4")
    srd(a, 12, 6, WS_XN, S * D * 2)
    srd(a, 16, 6, WS_WGU, 28 * 32 * 4 * 1024)
    srd(a, 20, 6, WS_H, 64 * 112 * 1024)
    a("s_lshl_b32 s24, s9, 2"); a("s_add_u32 s24, s24, s8"); a("s_lshl_b32 s24, s24, 15")
    a("s_lshl_b32 s25, s10, 17"); a("s_lshl_b32 s26, s8, 12"); a("s_add_u32 s25, s25, s26")
    a("s_mov_b32 s44, %s" % fhex(-LOG2E))
    a("v_lshlrev_b32 v2, 4, v1")
    a("s_lshr_b32 s27, s8, 1"); a("s_lshl_b32 s27, s27, 13")
    a("v_add_u32 v3, s27, v2")
    a("s_and_b32 s27, s8, 1"); a("s_lshl_b32 s27, s27, 10"); a("s_add_u32 s27, s27, 16384")
    a("v_add_u32 v4, s27, v2")
    def dma(t, stage):
        a("s_add_u32 m0, s26, %d" % (stage * 32768))
        a("s_add_u32 s28, s24, %d" % (t * 4096))
        for i in range(4):
            a("buffer_load_dwordx4 v2, s[12:15], s28 offen offset:%d lds" % (1024 * i))
        a("s_add_u32 m0, s26, %d" % (stage * 32768 + 16384))
        a("s_add_u32 s29, s25, %d" % (t * 16384))
        for i in range(4):
            a("buffer_load_dwordx4 v2, s[16:19], s29 offen offset:%d lds" % (1024 * i))
    cfg = dict(KT=8, KS=4, STAGE=32768, NW=2, NX=2, vW=4, vX=3, dma=dma,
               woff=lambda kbl, i: kbl * 4096 + i * 2048, xoff=lambda kbl, j: j * 4096 + kbl * 1024,
               acc=lambda i, j: 64 + (i * 2 + j) * 16,
               fw=lambda s, i: 128 + s * 16 + i * 4, fx=lambda s, j: 136 + s * 16 + j * 4)
    mainloop(a, cfg)
    a("v_and_b32 v5, 31, v1"); a("v_lshlrev_b32 v5, 4, v5")
    a("v_lshrrev_b32 v6, 5, v1"); a("v_lshlrev_b32 v6, 3, v6"); a("v_add_u32 v5, v5, v6")
    a("s_lshr_b32 s27, s8, 1"); a("s_lshl_b32 s27, s27, 1"); a("s_lshl_b32 s28, s9, 2"); a("s_add_u32 s27, s27, s28")
    a("s_mul_i32 s27, s27, 112")
    a("s_and_b32 s28, s8, 1"); a("s_lshl_b32 s28, s28, 1"); a("s_lshl_b32 s29, s10, 2"); a("s_add_u32 s28, s28, s29")
    a("s_add_u32 s27, s27, s28"); a("s_lshl_b32 s27, s27, 10")
    a("s_add_u32 s28, s27, %d" % (112 * 1024))
    a("s_nop 15"); a("s_nop 7")
    for j in range(2):
        G = cfg['acc'](0, j); U = cfg['acc'](1, j)
        for q in range(4):
            outp = []
            for hp in range(2):
                g0, g1 = G + 4 * q + 2 * hp, G + 4 * q + 2 * hp + 1
                u0, u1 = U + 4 * q + 2 * hp, U + 4 * q + 2 * hp + 1
                bf16r_pair(a, g0, g1, 160)
                silu_pair(a, g0, g1, 160, 161)
                bf16r_pair(a, g0, g1, 160)
                bf16r_pair(a, u0, u1, 160)
                a("v_mul_f32 v%d, v%d, v%d" % (g0, g0, u0)); a("v_mul_f32 v%d, v%d, v%d" % (g1, g1, u1))
                o = 162 + 2 * ((j * 4 + q) & 7) + hp
                a("v_cvt_pk_bf16_f32 v%d, v%d, v%d" % (o, g0, g1))
            o = 162 + 2 * ((j * 4 + q) & 7)
            a("buffer_store_dwordx2 v[%d:%d], v5, s[20:23], s%d offen offset:%d" % (o, o + 1, 27 + j, (q >> 1) * 1024 + (q & 1) * 512))

def gen_gemm2(a, L):
    a("v_and_b32 v1, 63, v0")
    a("v_lshrrev_b32 v2, 6, v0")
    a("s_nop 0")
    a("v_readfirstlane_b32 s8, v2")
    a("s_and_b32 s9, s3, 31")
    a("s_lshr_b32 s10, s3, 5")
    srd(a, 12, 6, WS_H, 64 * 112 * 1024)
    srd(a, 16, 6, WS_WD, 8 * 112 * 2 * 1024)
    srd(a, 20, 6, WS_G, S * D * 2)
    a("s_lshl_b32 s24, s9, 1"); a("s_lshr_b32 s26, s8, 1"); a("s_add_u32 s24, s24, s26")
    a("s_mul_i32 s24, s24, %d" % (112 * 1024))
    a("s_and_b32 s26, s8, 1"); a("s_lshl_b32 s26, s26, 12"); a("s_add_u32 s24, s24, s26")
    a("s_mul_i32 s25, s10, %d" % (112 * 2048)); a("s_lshl_b32 s26, s8, 12"); a("s_add_u32 s25, s25, s26")
    a("s_mov_b32 s44, %s" % fhex(-LOG2E))
    a("v_lshlrev_b32 v2, 4, v1")
    a("s_lshr_b32 s27, s8, 1"); a("s_lshl_b32 s27, s27, 13")
    a("v_add_u32 v3, s27, v2")
    a("s_and_b32 s27, s8, 1"); a("s_lshl_b32 s27, s27, 10"); a("s_add_u32 s27, s27, 16384")
    a("v_add_u32 v4, s27, v2")
    def dma(t, stage):
        a("s_add_u32 m0, s26, %d" % (stage * 32768))
        a("s_add_u32 s28, s24, %d" % (t * 8192))
        for i in range(4):
            a("buffer_load_dwordx4 v2, s[12:15], s28 offen offset:%d lds" % (1024 * i))
        a("s_add_u32 m0, s26, %d" % (stage * 32768 + 16384))
        a("s_add_u32 s29, s25, %d" % (t * 16384))
        for i in range(4):
            a("buffer_load_dwordx4 v2, s[16:19], s29 offen offset:%d lds" % (1024 * i))
    cfg = dict(KT=14, KS=8, STAGE=32768, NW=1, NX=1, vW=4, vX=3, dma=dma,
               woff=lambda kbl, i: kbl * 2048, xoff=lambda kbl, j: kbl * 1024,
               acc=lambda i, j: 64,
               fw=lambda s, i: 128 + s * 16, fx=lambda s, j: 136 + s * 16)
    mainloop(a, cfg)
    a("v_and_b32 v5, 31, v1"); a("v_lshlrev_b32 v5, 10, v5")
    a("v_lshrrev_b32 v6, 5, v1"); a("v_lshlrev_b32 v6, 3, v6"); a("v_add_u32 v5, v5, v6")
    a("s_lshl_b32 s27, s9, 6"); a("s_lshr_b32 s28, s8, 1"); a("s_lshl_b32 s28, s28, 5"); a("s_add_u32 s27, s27, s28")
    a("s_lshl_b32 s27, s27, 10")
    a("s_lshl_b32 s28, s10, 6"); a("s_and_b32 s29, s8, 1"); a("s_lshl_b32 s29, s29, 5"); a("s_add_u32 s28, s28, s29")
    a("s_lshl_b32 s28, s28, 1"); a("s_add_u32 s27, s27, s28")
    a("s_nop 15"); a("s_nop 7")
    A = 64
    for q in range(4):
        for hp in range(2):
            g0, g1 = A + 4 * q + 2 * hp, A + 4 * q + 2 * hp + 1
            bf16r_pair(a, g0, g1, 160)
            silu_pair(a, g0, g1, 160, 161)
            a("v_cvt_pk_bf16_f32 v%d, v%d, v%d" % (162 + 2 * q + hp, g0, g1))
        a("buffer_store_dwordx2 v[%d:%d], v5, s[20:23], s27 offen offset:%d" % (162 + 2 * q, 163 + 2 * q, q * 16))
```

```python
from asmlib import *
from layout import *

def gen_rowfft(a, L):
    a("v_and_b32 v1, 63, v0")
    a("v_lshrrev_b32 v2, 6, v0")
    a("s_nop 0")
    a("v_readfirstlane_b32 s8, v2")
    a("s_waitcnt lgkmcnt(0)")
    a("s_lshl_b32 s9, s3, 2")
    a("s_add_u32 s9, s9, s8")
    a("s_mul_i32 s10, s8, 4608")
    srd(a, 12, 4, 0, S * D * 2)
    srd(a, 16, 6, WS_XN, S * D * 2)
    srd(a, 20, 6, WS_X1T, X1T_BYTES)
    a("s_lshl_b32 s11, s9, 11")
    a("v_lshlrev_b32 v3, 4, v1")
    a("buffer_load_dwordx4 v[4:7], v3, s[12:15], s11 offen")
    a("buffer_load_dwordx4 v[8:11], v3, s[12:15], s11 offen offset:1024")
    a("s_mov_b32 s26, %s" % fhex(math.sqrt(0.5)))
    SC = "s26"
    T1 = {q: (52 + 2 * (q - 1), 53 + 2 * (q - 1)) for q in range(1, 8)}
    T2 = {q: (66 + 2 * (q - 1), 67 + 2 * (q - 1)) for q in range(1, 8)}
    gen_twiddles(a, 1, 512, range(1, 8), T1, 12, fhex(-1.0 / 512))
    a("v_and_b32 v13, 7, v1")
    gen_twiddles(a, 13, 64, range(1, 8), T2, 12, fhex(-1.0 / 64))
    a("v_mul_u32_u24 v14, 72, v1")
    a("v_add_u32 v14, s10, v14")
    a("v_lshrrev_b32 v12, 3, v1")
    a("v_add_u32 v15, v12, v1")
    a("v_lshlrev_b32 v15, 3, v15")
    a("v_add_u32 v15, s10, v15")
    a("v_lshlrev_b32 v80, 3, v1")
    a("v_add_u32 v80, s10, v80")
    a("v_mul_u32_u24 v81, 576, v12")
    a("v_add_u32 v81, s10, v81")
    a("v_lshlrev_b32 v82, 3, v13")
    a("v_add_u32 v82, v81, v82")
    a("v_lshlrev_b32 v83, 6, v13")
    a("v_add_u32 v83, v81, v83")
    a("v_sub_u32 v84, 256, v1")
    a("v_lshlrev_b32 v84, 3, v84")
    a("v_add_u32 v84, s10, v84")
    a("v_lshrrev_b32 v85, 1, v1")
    a("v_lshlrev_b32 v85, 10, v85")
    a("v_and_b32 v12, 1, v1")
    a("v_lshlrev_b32 v12, 9, v12")
    a("v_add_u32 v85, v85, v12")
    a("v_lshlrev_b32 v86, 14, v1")
    a("s_lshr_b32 s27, s9, 4")
    a("s_lshl_b32 s27, s27, 15")
    a("s_and_b32 s28, s9, 15")
    a("s_lshl_b32 s28, s28, 5")
    a("s_add_u32 s27, s27, s28")
    a("s_lshl_b32 s29, s9, 4")
    a("v_mov_b32 v87, %s" % fhex(1.0 / 512))
    a("s_waitcnt vmcnt(0)")
    for j in range(4):
        a("v_lshlrev_b32 v%d, 16, v%d" % (16 + 4 * j, 4 + j))
        a("v_and_b32 v%d, 0xffff0000, v%d" % (18 + 4 * j, 4 + j))
        a("v_lshlrev_b32 v%d, 16, v%d" % (17 + 4 * j, 8 + j))
        a("v_and_b32 v%d, 0xffff0000, v%d" % (19 + 4 * j, 8 + j))
    XA = [16 + 2 * i for i in range(8)]; XB = [17 + 2 * i for i in range(8)]
    def reduce2(ra, rb):
        for ctl in ["row_shr:1", "row_shr:2", "row_shr:4", "row_shr:8"]:
            a("s_nop 1")
            for r in (ra, rb):
                a("v_add_f32_dpp v%d, v%d, v%d %s row_mask:0xf bank_mask:0xf bound_ctrl:0" % (r, r, r, ctl))
        for ctl in ["row_bcast:15 row_mask:0xa", "row_bcast:31 row_mask:0xc"]:
            a("s_nop 1")
            for r in (ra, rb):
                a("v_add_f32_dpp v%d, v%d, v%d %s bank_mask:0xf" % (r, r, r, ctl))
        a("s_nop 1")
    a("v_add_f32 v88, v%d, v%d" % (XA[0], XA[1])); a("v_add_f32 v89, v%d, v%d" % (XB[0], XB[1]))
    for i in range(2, 8):
        a("v_add_f32 v88, v88, v%d" % XA[i]); a("v_add_f32 v89, v89, v%d" % XB[i])
    reduce2(88, 89)
    a("v_readlane_b32 s30, v88, 63"); a("v_readlane_b32 s31, v89, 63")
    a("s_nop 1")
    a("v_mul_f32 v90, s30, v87"); a("v_mul_f32 v91, s31, v87")
    a("v_sub_f32 v12, v%d, v90" % XA[0]); a("v_sub_f32 v13, v%d, v91" % XB[0])
    a("v_mul_f32 v88, v12, v12"); a("v_mul_f32 v89, v13, v13")
    for i in range(1, 8):
        a("v_sub_f32 v12, v%d, v90" % XA[i]); a("v_sub_f32 v13, v%d, v91" % XB[i])
        a("v_fmac_f32 v88, v12, v12"); a("v_fmac_f32 v89, v13, v13")
    reduce2(88, 89)
    a("v_readlane_b32 s30, v88, 63"); a("v_readlane_b32 s31, v89, 63")
    a("s_nop 1")
    a("v_mul_f32 v92, s30, v87"); a("v_mul_f32 v93, s31, v87")
    a("v_cvt_pk_bf16_f32 v12, v90, v91")
    a("v_lshlrev_b32 v90, 16, v12"); a("v_and_b32 v91, 0xffff0000, v12")
    a("v_cvt_pk_bf16_f32 v12, v92, v93")
    a("v_lshlrev_b32 v92, 16, v12"); a("v_and_b32 v93, 0xffff0000, v12")
    a("v_add_f32 v92, %s, v92" % fhex(1e-5)); a("v_add_f32 v93, %s, v93" % fhex(1e-5))
    a("v_cvt_pk_bf16_f32 v12, v92, v93")
    a("v_lshlrev_b32 v92, 16, v12"); a("v_and_b32 v93, 0xffff0000, v12")
    a("v_sqrt_f32 v92, v92"); a("v_sqrt_f32 v93, v93"); a("s_nop 0")
    a("v_cvt_pk_bf16_f32 v12, v92, v93")
    a("v_lshlrev_b32 v92, 16, v12"); a("v_and_b32 v93, 0xffff0000, v12")
    a("v_rcp_f32 v94, v92"); a("v_rcp_f32 v95, v93"); a("s_nop 0")
    a("v_fma_f32 v12, -v92, v94, 1.0"); a("v_fma_f32 v13, -v93, v95, 1.0")
    a("v_fma_f32 v94, v94, v12, v94"); a("v_fma_f32 v95, v95, v13, v95")
    for (X, mreg, rreg, out) in ((XA, 90, 94, 96), (XB, 91, 95, 100)):
        for j in range(4):
            x0, x1 = X[2 * j], X[2 * j + 1]
            a("v_sub_f32 v12, v%d, v%d" % (x0, mreg)); a("v_sub_f32 v13, v%d, v%d" % (x1, mreg))
            a("v_cvt_pk_bf16_f32 v12, v12, v13")
            a("v_and_b32 v13, 0xffff0000, v12"); a("v_lshlrev_b32 v12, 16, v12")
            a("v_mul_f32 v12, v12, v%d" % rreg); a("v_mul_f32 v13, v13, v%d" % rreg)
            a("v_cvt_pk_bf16_f32 v%d, v12, v13" % (out + j))
            a("v_lshlrev_b32 v%d, 16, v%d" % (x0, out + j)); a("v_and_b32 v%d, 0xffff0000, v%d" % (x1, out + j))
    a("buffer_store_dwordx4 v[96:99], v85, s[16:19], s27 offen")
    a("buffer_store_dwordx4 v[100:103], v85, s[16:19], s27 offen offset:16")
    for i in range(8):
        a("ds_write_b64 v14, v[%d:%d] offset:%d" % (16 + 2 * i, 17 + 2 * i, 8 * i))
    pool = Pool(104, 24)
    vals = []
    for m in range(8):
        p = pool.alloc(); vals.append(CV(p))
        a("ds_read_b64 v[%d:%d], v15 offset:%d" % (p, p + 1, 576 * m))
    a("s_waitcnt lgkmcnt(0)")
    y = dft8(a, pool, vals, -1, SC)
    for q in range(1, 8):
        y[q] = twiddle(a, pool, y[q], *T1[q])
    for q in range(8):
        assert plain(y[q])
        a("ds_write_b64 v80, v[%d:%d] offset:%d" % (y[q]['p'], y[q]['p'] + 1, 576 * q))
    for q in range(8): pool.release(y[q]['p'])
    vals = []
    for m in range(8):
        p = pool.alloc(); vals.append(CV(p))
        a("ds_read_b64 v[%d:%d], v82 offset:%d" % (p, p + 1, 64 * m))
    a("s_waitcnt lgkmcnt(0)")
    y = dft8(a, pool, vals, -1, SC)
    for q in range(1, 8):
        y[q] = twiddle(a, pool, y[q], *T2[q])
    for q in range(8):
        a("ds_write_b64 v80, v[%d:%d] offset:%d" % (y[q]['p'], y[q]['p'] + 1, 576 * q))
    for q in range(8): pool.release(y[q]['p'])
    vals = []
    for u in range(8):
        p = pool.alloc(); vals.append(CV(p))
        a("ds_read_b64 v[%d:%d], v83 offset:%d" % (p, p + 1, 8 * u))
    a("s_waitcnt lgkmcnt(0)")
    Z = dft8(a, pool, vals, -1, SC)
    for q in range(8):
        assert plain(Z[q])
        a("ds_write_b64 v80, v[%d:%d] offset:%d" % (Z[q]['p'], Z[q]['p'] + 1, 512 * q))
    a("ds_write_b64 v80, v[%d:%d] offset:4096" % (Z[0]['p'], Z[0]['p'] + 1))
    P = []
    for j in range(5):
        p = pool.alloc(); P.append(p)
        a("ds_read_b64 v[%d:%d], v84 offset:%d" % (p, p + 1, 512 * (4 - j)))
    a("s_waitcnt lgkmcnt(0)")
    for j in range(5):
        z = Z[j]['p']; p = P[j]; o = 152 + 4 * j
        a("v_add_f32 v%d, v%d, v%d" % (o, z, p))
        a("v_sub_f32 v%d, v%d, v%d" % (o + 1, z + 1, p + 1))
        a("v_add_f32 v%d, v%d, v%d" % (o + 2, z + 1, p + 1))
        a("v_sub_f32 v%d, v%d, v%d" % (o + 3, p, z))
    for j in range(4):
        a("s_add_u32 s32, s29, 0x%x" % (j * 64 * 16384))
        a("buffer_store_dwordx4 v[%d:%d], v86, s[20:23], s32 offen" % (152 + 4 * j, 155 + 4 * j))
    a("s_add_u32 s32, s29, 0x%x" % (256 * 16384))
    a("v_cmp_eq_u32 vcc, 0, v1")
    a("s_and_saveexec_b64 s[34:35], vcc")
    a("buffer_store_dwordx4 v[168:171], v86, s[20:23], s32 offen")
    a("s_mov_b64 exec, s[34:35]")
```

```python
from asmlib import *
from layout import *

def gen_rowifft(a, L):
    a("s_load_dwordx2 s[36:37], s[0:1], 56")
    a("v_and_b32 v1, 63, v0")
    a("v_lshrrev_b32 v2, 6, v0")
    a("s_nop 0")
    a("v_readfirstlane_b32 s8, v2")
    a("s_lshl_b32 s9, s3, 2")
    a("s_add_u32 s9, s9, s8")
    a("s_mul_i32 s10, s8, 4608")
    srd(a, 12, 4, 0, S * D * 2)
    srd(a, 16, 6, WS_G, S * D * 2)
    srd(a, 20, 6, WS_X1T, X1T_BYTES)
    a("s_lshl_b32 s11, s9, 11")
    a("v_lshlrev_b32 v3, 4, v1")
    a("v_lshlrev_b32 v86, 14, v1")
    a("s_lshl_b32 s29, s9, 4")
    for j in range(5):
        a("s_add_u32 s32, s29, 0x%x" % (j * 64 * 16384))
        a("buffer_load_dwordx4 v[%d:%d], v86, s[20:23], s32 offen" % (152 + 4 * j, 155 + 4 * j))
    a("buffer_load_dwordx4 v[4:7], v3, s[12:15], s11 offen")
    a("buffer_load_dwordx4 v[8:11], v3, s[12:15], s11 offen offset:1024")
    a("buffer_load_dwordx4 v[176:179], v3, s[16:19], s11 offen")
    a("buffer_load_dwordx4 v[180:183], v3, s[16:19], s11 offen offset:1024")
    a("s_mov_b32 s26, %s" % fhex(math.sqrt(0.5)))
    SC = "s26"
    T1 = {q: (52 + 2 * (q - 1), 53 + 2 * (q - 1)) for q in range(1, 8)}
    T2 = {q: (66 + 2 * (q - 1), 67 + 2 * (q - 1)) for q in range(1, 8)}
    gen_twiddles(a, 1, 512, range(1, 8), T1, 12, fhex(-1.0 / 512))
    a("v_and_b32 v13, 7, v1")
    gen_twiddles(a, 13, 64, range(1, 8), T2, 12, fhex(-1.0 / 64))
    a("v_mul_u32_u24 v14, 72, v1")
    a("v_add_u32 v14, s10, v14")
    a("v_lshrrev_b32 v12, 3, v1")
    a("v_add_u32 v15, v12, v1")
    a("v_lshlrev_b32 v15, 3, v15")
    a("v_add_u32 v15, s10, v15")
    a("v_lshlrev_b32 v80, 3, v1")
    a("v_add_u32 v80, s10, v80")
    a("v_mul_u32_u24 v81, 576, v12")
    a("v_add_u32 v81, s10, v81")
    a("v_lshlrev_b32 v82, 3, v13")
    a("v_add_u32 v82, v81, v82")
    a("v_lshlrev_b32 v83, 6, v13")
    a("v_add_u32 v83, v81, v83")
    a("v_sub_u32 v84, 256, v1")
    a("v_lshlrev_b32 v84, 3, v84")
    a("v_add_u32 v84, s10, v84")
    a("s_waitcnt lgkmcnt(0)")
    srd(a, 40, 36, 0, S * D * 2)
    a("v_cmp_eq_u32 vcc, 0, v1")
    pool = Pool(104, 24)
    a("s_waitcnt vmcnt(4)")
    for j in (0, 4):
        o = 152 + 4 * j
        a("v_cndmask_b32 v%d, v%d, 0, vcc" % (o + 1, o + 1))
        a("v_cndmask_b32 v%d, v%d, 0, vcc" % (o + 3, o + 3))
    Z = [None] * 8
    for j in range(5):
        o = 152 + 4 * j
        p = pool.alloc()
        a("v_sub_f32 v%d, v%d, v%d" % (p, o, o + 3))
        a("v_add_f32 v%d, v%d, v%d" % (p + 1, o + 1, o + 2))
        if j < 4:
            Z[j] = CV(p)
            m = pool.alloc()
            a("v_add_f32 v%d, v%d, v%d" % (m, o, o + 3))
            a("v_sub_f32 v%d, v%d, v%d" % (m + 1, o + 2, o + 1))
            a("ds_write_b64 v84, v[%d:%d] offset:%d" % (m, m + 1, 512 * (4 - j)))
            pool.release(m)
        else:
            a("ds_write_b64 v84, v[%d:%d] offset:0" % (p, p + 1))
            pool.release(p)
    for j in range(4, 8):
        p = pool.alloc(); Z[j] = CV(p)
        a("ds_read_b64 v[%d:%d], v80 offset:%d" % (p, p + 1, 512 * j))
    a("s_waitcnt lgkmcnt(0)")
    y = dft8(a, pool, Z, +1, SC)
    for u in range(8):
        a("ds_write_b64 v83, v[%d:%d] offset:%d" % (y[u]['p'], y[u]['p'] + 1, 8 * u))
    for u in range(8): pool.release(y[u]['p'])
    vals = []
    for q in range(8):
        p = pool.alloc(); vals.append(CV(p))
        a("ds_read_b64 v[%d:%d], v80 offset:%d" % (p, p + 1, 576 * q))
    a("s_waitcnt lgkmcnt(0)")
    for q in range(1, 8): vals[q] = twiddle(a, pool, vals[q], *T2[q], conj=True)
    y = dft8(a, pool, vals, +1, SC)
    for m in range(8):
        a("ds_write_b64 v82, v[%d:%d] offset:%d" % (y[m]['p'], y[m]['p'] + 1, 64 * m))
    for m in range(8): pool.release(y[m]['p'])
    vals = []
    for q in range(8):
        p = pool.alloc(); vals.append(CV(p))
        a("ds_read_b64 v[%d:%d], v80 offset:%d" % (p, p + 1, 576 * q))
    a("s_waitcnt lgkmcnt(0)")
    for q in range(1, 8): vals[q] = twiddle(a, pool, vals[q], *T1[q], conj=True)
    y = dft8(a, pool, vals, +1, SC)
    for m in range(8):
        a("ds_write_b64 v15, v[%d:%d] offset:%d" % (y[m]['p'], y[m]['p'] + 1, 576 * m))
    for m in range(8): pool.release(y[m]['p'])
    for i in range(8):
        a("ds_read_b64 v[%d:%d], v14 offset:%d" % (16 + 2 * i, 17 + 2 * i, 8 * i))
    a("v_mov_b32 v87, %s" % fhex(2.0 ** -21))
    a("s_waitcnt vmcnt(0) lgkmcnt(0)")
    for (row, xr, gr, out) in ((0, 4, 176, 96), (1, 8, 180, 100)):
        for j in range(4):
            s0 = 16 + 4 * j + row; s1 = 18 + 4 * j + row
            a("v_mul_f32 v12, v87, v%d" % s0); a("v_mul_f32 v13, v87, v%d" % s1)
            a("v_cvt_pk_bf16_f32 v12, v12, v13")
            a("v_lshlrev_b32 v88, 16, v%d" % (gr + j)); a("v_and_b32 v89, 0xffff0000, v%d" % (gr + j))
            a("v_and_b32 v13, 0xffff0000, v12"); a("v_lshlrev_b32 v12, 16, v12")
            a("v_mul_f32 v12, v12, v88"); a("v_mul_f32 v13, v13, v89")
            a("v_cvt_pk_bf16_f32 v12, v12, v13")
            a("v_lshlrev_b32 v88, 16, v%d" % (xr + j)); a("v_and_b32 v89, 0xffff0000, v%d" % (xr + j))
            a("v_and_b32 v13, 0xffff0000, v12"); a("v_lshlrev_b32 v12, 16, v12")
            a("v_add_f32 v12, v12, v88"); a("v_add_f32 v13, v13, v89")
            a("v_cvt_pk_bf16_f32 v%d, v12, v13" % (out + j))
    a("buffer_store_dwordx4 v[96:99], v3, s[40:43], s11 offen")
    a("buffer_store_dwordx4 v[100:103], v3, s[40:43], s11 offen offset:1024")
```

```python
from asmlib import *
from layout import *

NJOB_GU = 2 * 28 * 32
NJOB_WD = 8 * 112
NWG_WPREP = (NJOB_GU + NJOB_WD) // 4

def gen_wprep_w(a, L):
    a("s_load_dwordx4 s[36:39], s[0:1], 32")
    a("s_load_dwordx2 s[40:41], s[0:1], 48")
    a("v_and_b32 v1, 63, v0")
    a("v_lshrrev_b32 v2, 6, v0")
    a("s_nop 0")
    a("v_readfirstlane_b32 s8, v2")
    a("s_lshl_b32 s9, s3, 2")
    a("s_add_u32 s9, s9, s8")
    a("s_waitcnt lgkmcnt(0)")
    a("s_cmp_ge_u32 s9, %d" % NJOB_GU)
    a("s_cbranch_scc1 %s_wd" % L)
    a("s_and_b32 s10, s9, 1")
    a("s_lshr_b32 s11, s9, 1")
    a("s_lshr_b32 s24, s11, 5")
    a("s_and_b32 s25, s11, 31")
    a("s_cmp_eq_u32 s10, 0")
    a("s_cselect_b32 s12, s36, s38")
    a("s_cselect_b32 s13, s37, s39")
    a("s_mov_b32 s14, %d" % (D * F * 2))
    a("s_mov_b32 s15, 0x00020000")
    a("s_mul_i32 s26, s25, %d" % (16 * 3584))
    a("s_lshl_b32 s27, s24, 7")
    a("s_add_u32 s26, s26, s27")
    a("s_lshl_b32 s27, s24, 5")
    a("s_add_u32 s27, s27, s25")
    a("s_lshl_b32 s27, s27, 2")
    a("s_lshl_b32 s28, s10, 1")
    a("s_add_u32 s27, s27, s28")
    a("s_lshl_b32 s27, s27, 10")
    srd(a, 20, 6, WS_WGU, 28 * 32 * 4 * 1024)
    a("s_mov_b32 s29, 3584")
    a("s_branch %s_go" % L)
    a.label("%s_wd" % L)
    a("s_sub_u32 s11, s9, %d" % NJOB_GU)
    a("s_mul_hi_u32 s24, s11, 0x%x" % ((2**32 + 111) // 112))
    a("s_mul_i32 s25, s24, 112")
    a("s_sub_u32 s25, s11, s25")
    a("s_mov_b32 s12, s40"); a("s_mov_b32 s13, s41")
    a("s_mov_b32 s14, %d" % (F * D * 2))
    a("s_mov_b32 s15, 0x00020000")
    a("s_lshl_b32 s26, s25, 14")
    a("s_lshl_b32 s27, s24, 7")
    a("s_add_u32 s26, s26, s27")
    a("s_mul_i32 s27, s24, 112")
    a("s_add_u32 s27, s27, s25")
    a("s_lshl_b32 s27, s27, 11")
    srd(a, 20, 6, WS_WD, 8 * 112 * 2 * 1024)
    a("s_mov_b32 s29, 1024")
    a.label("%s_go" % L)
    a("v_and_b32 v2, 31, v1")
    a("v_lshrrev_b32 v3, 5, v1")
    a("s_lshl_b32 s30, s29, 3")
    a("v_mul_lo_u32 v4, v3, s30")
    a("v_lshlrev_b32 v5, 2, v2")
    a("v_add_u32 v4, v4, v5")
    a("s_mov_b32 s31, s26")
    for e in range(8):
        a("buffer_load_dword v%d, v4, s[12:15], s31 offen" % (8 + e))
        if e < 7: a("s_add_u32 s31, s31, s29")
    a("v_lshrrev_b32 v5, 4, v2")
    a("v_lshlrev_b32 v5, 10, v5")
    a("v_lshlrev_b32 v6, 9, v3")
    a("v_add_u32 v5, v5, v6")
    a("v_and_b32 v6, 15, v2")
    a("v_lshlrev_b32 v6, 5, v6")
    a("v_add_u32 v5, v5, v6")
    a("s_mov_b32 s32, 0x05040100")
    a("s_mov_b32 s33, 0x07060302")
    a("s_waitcnt vmcnt(0)")
    for i in range(4):
        a("v_perm_b32 v%d, v%d, v%d, s32" % (16 + i, 9 + 2 * i, 8 + 2 * i))
        a("v_perm_b32 v%d, v%d, v%d, s33" % (20 + i, 9 + 2 * i, 8 + 2 * i))
    a("buffer_store_dwordx4 v[16:19], v5, s[20:23], s27 offen")
    a("buffer_store_dwordx4 v[20:23], v5, s[20:23], s27 offen offset:16")
```

```python
import sys, re
from asmlib import *
from layout import *
import k_rowfft, k_colfft, k_rowifft, k_wprep, k_gemm

NAME = "recurrent_scan__spectral_gfnet__swiglu_ffn__prompt"
REF = open("cdna_kernels/%s.s.ref" % NAME).read()
HEADER = "".join(l + "\n" for l in REF.split("\n") if l.startswith(";") and "@launch" not in l)

def prologue(a, nwg, L):
    a("s_load_dwordx2 s[4:5], s[0:1], 0")
    a("s_load_dwordx2 s[6:7], s[0:1], 72")
    a("s_cmp_ge_u32 s2, %d" % nwg)
    a("s_cbranch_scc1 %s_end" % L)

def build(kernels):
    out = HEADER
    for (name, grid, block, lds, body, vgpr) in kernels:
        out += "; @launch kernel=%s grid=(%d,1,1) block=(%d,1,1) lds=%d\n" % (name, grid, block, lds)
    out += '.amdgcn_target "amdgcn-amd-amdhsa--gfx950"\n'
    for (name, grid, block, lds, body, vgpr) in kernels:
        out += kernel_text(name, body, vgpr)
    return out

def k_a():
    a = Asm()
    prologue(a, 256, "ka")
    k_rowfft.gen_rowfft(a, "ka")
    a.label("ka_end")
    return ("ka_kernel", 256, 256, 4 * 4608, a.text(), 176)

def k_w():
    a = Asm()
    prologue(a, 320, "kw")
    a("s_mov_b32 s3, s2")
    k_colfft.gen_wprep(a, "kw")
    a.label("kw_end")
    return ("kw_kernel", 320, 256, 0, a.text(), 32)

def k_b():
    a = Asm()
    prologue(a, 257, "kb")
    a("s_mov_b32 s3, s2")
    a("s_waitcnt lgkmcnt(0)")
    k_colfft.gen_colfft(a, "kb")
    a.label("kb_end")
    return ("kb_kernel", 257, 256, 36864, a.text(), 152)

def k_e():
    a = Asm()
    prologue(a, 256, "ke")
    a("s_mov_b32 s3, s2")
    a("s_waitcnt lgkmcnt(0)")
    k_rowifft.gen_rowifft(a, "ke")
    a.label("ke_end")
    return ("ke_kernel", 256, 256, 4 * 4608, a.text(), 184)

def k_p():
    a = Asm()
    prologue(a, k_wprep.NWG_WPREP, "kp")
    a("s_mov_b32 s3, s2")
    k_wprep.gen_wprep_w(a, "kp")
    a.label("kp_end")
    return ("kp_kernel", k_wprep.NWG_WPREP, 256, 0, a.text(), 32)

def k_c():
    a = Asm()
    prologue(a, 448, "kc")
    a("s_mov_b32 s3, s2")
    a("s_waitcnt lgkmcnt(0)")
    k_gemm.gen_gemm1(a, "kc")
    a.label("kc_end")
    return ("kc_kernel", 448, 256, 65536, a.text(), 180)

def k_d():
    a = Asm()
    prologue(a, 256, "kd")
    a("s_mov_b32 s3, s2")
    a("s_waitcnt lgkmcnt(0)")
    k_gemm.gen_gemm2(a, "kd")
    a.label("kd_end")
    return ("kd_kernel", 256, 256, 65536, a.text(), 180)

if __name__ == "__main__":
    ks = [k_a(), k_w(), k_p(), k_b(), k_c(), k_d(), k_e()]
    txt = build(ks)
    open(sys.argv[1] if len(sys.argv) > 1 else "cdna_kernels/%s.s" % NAME, "w").write(txt)
```

```python
from asmlib import *
from layout import *

LOG2E = 1.4426950408889634
NWG_GEMM1 = 224

class VM:
    def __init__(self): self.ops = []
    def issue(self, tag): self.ops.append(tag)
    def wait_n(self, tags):
        last = max(i for i, t in enumerate(self.ops) if t in tags)
        return len(self.ops) - 1 - last

def gen_gemm1(a, L, P=8):
    XS = 16
    BS = 48
    ACC = BS + 8 * P
    vm = VM()
    a("v_and_b32 v1, 63, v0")
    a("v_lshrrev_b32 v2, 6, v0")
    a("s_nop 0")
    a("v_readfirstlane_b32 s8, v2")
    a("s_and_b32 s28, s3, 7"); a("s_lshr_b32 s29, s3, 3")
    a("s_lshr_b32 s9, s28, 1"); a("s_lshl_b32 s9, s9, 2"); a("s_and_b32 s30, s29, 3"); a("s_add_u32 s9, s9, s30")
    a("s_and_b32 s10, s28, 1"); a("s_mul_i32 s10, s10, 7"); a("s_lshr_b32 s30, s29, 2"); a("s_add_u32 s10, s10, s30")
    srd(a, 12, 6, WS_XN, S * D * 2)
    srd(a, 16, 6, WS_WGU, 28 * 32 * 4 * 1024)
    srd(a, 20, 6, WS_H, 64 * 112 * 1024)
    a("s_lshl_b32 s24, s9, 2"); a("s_add_u32 s24, s24, s8"); a("s_lshl_b32 s24, s24, 15")
    a("s_lshl_b32 s11, s10, 2"); a("s_add_u32 s11, s11, s8")
    a("s_lshr_b32 s25, s11, 1"); a("s_lshl_b32 s25, s25, 17"); a("s_and_b32 s28, s11, 1"); a("s_lshl_b32 s28, s28, 10"); a("s_add_u32 s25, s25, s28")
    a("s_lshl_b32 s26, s8, 12")
    a("s_mov_b32 s44, %s" % fhex(-LOG2E)); a("s_mov_b32 s45, s44")
    a("s_mov_b32 s46, 1.0"); a("s_mov_b32 s47, 1.0")
    a("v_lshlrev_b32 v2, 4, v1")
    bslot = lambda t: BS + 8 * (t % P)
    xset = lambda t: XS + 16 * (t & 1)
    def dmaA(g):
        a("s_add_u32 m0, s26, %d" % ((g % 4) * 16384))
        a("s_add_u32 s28, s24, %d" % (g * 4096))
        for i in range(4):
            a("buffer_load_dwordx4 v2, s[12:15], s28 offen offset:%d lds" % (1024 * i))
            vm.issue(("A", g))
    def loadB(t):
        r = bslot(t)
        a("s_add_u32 s29, s25, %d" % (t * 4096))
        a("buffer_load_dwordx4 v[%d:%d], v2, s[16:19], s29 offen" % (r, r + 3)); vm.issue(("B", t, 0))
        a("buffer_load_dwordx4 v[%d:%d], v2, s[16:19], s29 offen offset:2048" % (r + 4, r + 7)); vm.issue(("B", t, 1))
    def readX(t):
        g, kbl = t >> 2, t & 3
        for j in range(4):
            r = xset(t) + 4 * j
            a("ds_read_b128 v[%d:%d], v2 offset:%d" % (r, r + 3, (g % 4) * 16384 + j * 4096 + kbl * 1024))
    dmaA(0)
    for t in range(0, min(4, P)): loadB(t)
    dmaA(1)
    for t in range(4, P): loadB(t)
    dmaA(2); dmaA(3)
    a("s_waitcnt vmcnt(%d)" % vm.wait_n([("A", 0)]))
    a("s_barrier")
    readX(0)
    for t in range(32):
        g = t >> 2
        if t + 1 < 32:
            if (t + 1) % 4 == 0:
                a("s_waitcnt vmcnt(%d)" % vm.wait_n([("A", g + 1)]))
                a("s_barrier")
                if g >= 1 and g + 3 < 8: dmaA(g + 3)
            readX(t + 1)
            a("s_waitcnt lgkmcnt(4)")
        else:
            a("s_waitcnt lgkmcnt(0)")
        r = bslot(t)
        for j in range(4):
            for i in range(2):
                if j == 0:
                    a("s_waitcnt vmcnt(%d)" % vm.wait_n([("B", t, i)]))
                ac = ACC + (i * 4 + j) * 16
                w = r + 4 * i; x = xset(t) + 4 * j
                src = "0" if t == 0 else "v[%d:%d]" % (ac, ac + 15)
                a("v_mfma_f32_32x32x16_bf16 v[%d:%d], v[%d:%d], v[%d:%d], %s" % (ac, ac + 15, w, w + 3, x, x + 3, src))
        if t + P < 32: loadB(t + P)
    a("v_and_b32 v5, 31, v1"); a("v_lshlrev_b32 v5, 4, v5")
    a("v_lshrrev_b32 v6, 5, v1"); a("v_lshlrev_b32 v6, 3, v6"); a("v_add_u32 v5, v5, v6")
    a("s_lshl_b32 s27, s9, 2"); a("s_mul_i32 s27, s27, 112")
    a("s_lshl_b32 s28, s11, 1"); a("s_add_u32 s27, s27, s28"); a("s_lshl_b32 s27, s27, 10")
    a("s_nop 15"); a("s_nop 7")
    T = XS
    oi = 0
    for j in range(4):
        G = ACC + j * 16; U = ACC + (4 + j) * 16
        if j: a("s_add_u32 s27, s27, %d" % (112 * 1024))
        for q in range(4):
            prs = [(G + 4 * q, U + 4 * q), (G + 4 * q + 2, U + 4 * q + 2)]
            E = [T, T + 2]; t1 = [T + 4, T + 5]; t2 = [T + 6, T + 7]
            o = T + 8 + 2 * (oi % 8); oi += 1
            for k, (g0, u0) in enumerate(prs): a("v_cvt_pk_bf16_f32 v%d, v%d, v%d" % (t1[k], g0, g0 + 1))
            for k, (g0, u0) in enumerate(prs): a("v_cvt_pk_bf16_f32 v%d, v%d, v%d" % (t2[k], u0, u0 + 1))
            for k, (g0, u0) in enumerate(prs):
                a("v_lshlrev_b32 v%d, 16, v%d" % (g0, t1[k])); a("v_and_b32 v%d, 0xffff0000, v%d" % (g0 + 1, t1[k]))
            for k, (g0, u0) in enumerate(prs):
                a("v_pk_mul_f32 v[%d:%d], v[%d:%d], s[44:45]" % (E[k], E[k] + 1, g0, g0 + 1))
            for k in range(2):
                a("v_exp_f32 v%d, v%d" % (E[k], E[k])); a("v_exp_f32 v%d, v%d" % (E[k] + 1, E[k] + 1))
            for k, (g0, u0) in enumerate(prs):
                a("v_lshlrev_b32 v%d, 16, v%d" % (u0, t2[k])); a("v_and_b32 v%d, 0xffff0000, v%d" % (u0 + 1, t2[k]))
            for k in range(2):
                a("v_pk_add_f32 v[%d:%d], v[%d:%d], s[46:47]" % (E[k], E[k] + 1, E[k], E[k] + 1))
            for k in range(2):
                a("v_rcp_f32 v%d, v%d" % (E[k], E[k])); a("v_rcp_f32 v%d, v%d" % (E[k] + 1, E[k] + 1))
            a("s_nop 0")
            for k, (g0, u0) in enumerate(prs):
                a("v_pk_mul_f32 v[%d:%d], v[%d:%d], v[%d:%d]" % (g0, g0 + 1, g0, g0 + 1, E[k], E[k] + 1))
            for k, (g0, u0) in enumerate(prs): a("v_cvt_pk_bf16_f32 v%d, v%d, v%d" % (t1[k], g0, g0 + 1))
            for k, (g0, u0) in enumerate(prs):
                a("v_lshlrev_b32 v%d, 16, v%d" % (g0, t1[k])); a("v_and_b32 v%d, 0xffff0000, v%d" % (g0 + 1, t1[k]))
            for k, (g0, u0) in enumerate(prs):
                a("v_pk_mul_f32 v[%d:%d], v[%d:%d], v[%d:%d]" % (g0, g0 + 1, g0, g0 + 1, u0, u0 + 1))
            for k, (g0, u0) in enumerate(prs): a("v_cvt_pk_bf16_f32 v%d, v%d, v%d" % (o + k, g0, g0 + 1))
            a("buffer_store_dwordx2 v[%d:%d], v5, s[20:23], s27 offen offset:%d" % (o, o + 1, (q >> 1) * 1024 + (q & 1) * 512))
    return ACC + 128
```

```python
from asmlib import *
from layout import *
from k_gemm import bf16r_pair, silu_pair, LOG2E

def gen_gemm2(a, L, P=8):
    KSW = 28
    ACC = 16
    FR = 80
    a("v_and_b32 v1, 63, v0")
    a("v_lshrrev_b32 v2, 6, v0")
    a("s_nop 0")
    a("v_readfirstlane_b32 s8, v2")
    a("s_and_b32 s9, s3, 31")
    a("s_lshr_b32 s10, s3, 5")
    srd(a, 12, 6, WS_H, 64 * 112 * 1024)
    srd(a, 16, 6, WS_WD, 8 * 112 * 2 * 1024)
    srd(a, 20, 6, WS_G, S * D * 2)
    a("s_mul_i32 s26, s8, %d" % KSW)
    a("s_lshl_b32 s24, s9, 1"); a("s_mul_i32 s24, s24, 112"); a("s_add_u32 s24, s24, s26"); a("s_lshl_b32 s24, s24, 10")
    a("s_add_u32 s25, s24, %d" % (112 * 1024))
    a("s_mul_i32 s27, s10, 112"); a("s_add_u32 s27, s27, s26"); a("s_lshl_b32 s27, s27, 11")
    a("s_mov_b32 s44, %s" % fhex(-LOG2E))
    a("v_lshlrev_b32 v2, 4, v1")
    slot = lambda t: FR + 16 * (t % P)
    def loads(t):
        r = slot(t)
        if t % 4 == 0:
            a("s_add_u32 s30, s24, %d" % ((t >> 2) * 4096)); a("s_add_u32 s31, s25, %d" % ((t >> 2) * 4096))
        if t % 2 == 0:
            a("s_add_u32 s32, s27, %d" % ((t >> 1) * 4096))
        a("buffer_load_dwordx4 v[%d:%d], v2, s[16:19], s32 offen offset:%d" % (r, r + 3, (t & 1) * 2048))
        a("buffer_load_dwordx4 v[%d:%d], v2, s[12:15], s30 offen offset:%d" % (r + 8, r + 11, (t & 3) * 1024))
        a("buffer_load_dwordx4 v[%d:%d], v2, s[16:19], s32 offen offset:%d" % (r + 4, r + 7, (t & 1) * 2048 + 1024))
        a("buffer_load_dwordx4 v[%d:%d], v2, s[12:15], s31 offen offset:%d" % (r + 12, r + 15, (t & 3) * 1024))
    for t in range(min(P, KSW)):
        loads(t)
    for t in range(KSW):
        inflight = min(t + P, KSW) - t - 1
        r = slot(t)
        a("s_waitcnt vmcnt(%d)" % (4 * inflight + 2))
        for (i, j) in ((0, 0), (1, 0), (0, 1), (1, 1)):
            if (i, j) == (1, 0): a("s_waitcnt vmcnt(%d)" % (4 * inflight + 1))
            if (i, j) == (0, 1): a("s_waitcnt vmcnt(%d)" % (4 * inflight))
            ac = ACC + (i * 2 + j) * 16
            w = r + 4 * i; x = r + 8 + 4 * j
            src = "0" if t == 0 else "v[%d:%d]" % (ac, ac + 15)
            a("v_mfma_f32_32x32x16_bf16 v[%d:%d], v[%d:%d], v[%d:%d], %s" % (ac, ac + 15, w, w + 3, x, x + 3, src))
        if t + P < KSW:
            loads(t + P)
    a("s_lshl_b32 s28, s8, 14")
    a("v_add_u32 v3, s28, v2")
    a("s_nop 15"); a("s_nop 7")
    for b in range(4):
        for q in range(4):
            ac = ACC + b * 16 + q * 4
            a("ds_write_b128 v3, v[%d:%d] offset:%d" % (ac, ac + 3, (b * 4 + q) * 1024))
    a("s_waitcnt lgkmcnt(0)")
    a("s_barrier")
    a("s_lshl_b32 s28, s8, 12")
    a("v_add_u32 v3, s28, v2")
    for p in range(4):
        for q in range(4):
            a("ds_read_b128 v[%d:%d], v3 offset:%d" % (FR + p * 16 + q * 4, FR + p * 16 + q * 4 + 3, p * 16384 + q * 1024))
    a("v_and_b32 v5, 31, v1"); a("v_lshlrev_b32 v5, 10, v5")
    a("v_lshrrev_b32 v6, 5, v1"); a("v_lshlrev_b32 v6, 3, v6"); a("v_add_u32 v5, v5, v6")
    a("s_lshl_b32 s27, s9, 6"); a("s_and_b32 s28, s8, 1"); a("s_lshl_b32 s28, s28, 5"); a("s_add_u32 s27, s27, s28")
    a("s_lshl_b32 s27, s27, 10")
    a("s_lshl_b32 s28, s10, 6"); a("s_lshr_b32 s29, s8, 1"); a("s_lshl_b32 s29, s29, 5"); a("s_add_u32 s28, s28, s29")
    a("s_lshl_b32 s28, s28, 1"); a("s_add_u32 s27, s27, s28")
    a("s_waitcnt lgkmcnt(0)")
    for e in range(0, 16, 2):
        a("v_pk_add_f32 v[%d:%d], v[%d:%d], v[%d:%d]" % (FR + e, FR + e + 1, FR + e, FR + e + 1, FR + 16 + e, FR + 16 + e + 1))
    for e in range(0, 16, 2):
        a("v_pk_add_f32 v[%d:%d], v[%d:%d], v[%d:%d]" % (FR + e, FR + e + 1, FR + e, FR + e + 1, FR + 32 + e, FR + 32 + e + 1))
    for e in range(0, 16, 2):
        a("v_pk_add_f32 v[%d:%d], v[%d:%d], v[%d:%d]" % (FR + e, FR + e + 1, FR + e, FR + e + 1, FR + 48 + e, FR + 48 + e + 1))
    T = FR + 64
    for q in range(4):
        for hp in range(2):
            g0, g1 = FR + 4 * q + 2 * hp, FR + 4 * q + 2 * hp + 1
            bf16r_pair(a, g0, g1, T)
            silu_pair(a, g0, g1, T, T + 1)
            a("v_cvt_pk_bf16_f32 v%d, v%d, v%d" % (T + 2 + 2 * q + hp, g0, g1))
        a("buffer_store_dwordx2 v[%d:%d], v5, s[20:23], s27 offen offset:%d" % (T + 2 + 2 * q, T + 3 + 2 * q, q * 16))
    return max(FR + 16 * P, FR + 64 + 12)
```

```python
import sys, re
from asmlib import *
from layout import *
import k_rowfft, k_colfft, k_rowifft, k_wprep, k_gemm, k_gemm2, k_gemm1

NAME = "recurrent_scan__spectral_gfnet__swiglu_ffn__prompt"
REF = open("cdna_kernels/%s.s.ref" % NAME).read()
HEADER = "".join(l + "\n" for l in REF.split("\n") if l.startswith(";") and "@launch" not in l)

def prologue(a, nwg, L):
    a("s_load_dwordx2 s[4:5], s[0:1], 0")
    a("s_load_dwordx2 s[6:7], s[0:1], 72")
    a("s_cmp_ge_u32 s2, %d" % nwg)
    a("s_cbranch_scc1 %s_end" % L)

def xcd_remap(a, lg):
    a("s_and_b32 s3, s2, 7")
    a("s_lshl_b32 s3, s3, %d" % lg)
    a("s_lshr_b32 s45, s2, 3")
    a("s_add_u32 s3, s3, s45")

def build(kernels):
    out = HEADER
    for (name, grid, block, lds, body, vgpr) in kernels:
        out += "; @launch kernel=%s grid=(%d,1,1) block=(%d,1,1) lds=%d\n" % (name, grid, block, lds)
    out += '.amdgcn_target "amdgcn-amd-amdhsa--gfx950"\n'
    for (name, grid, block, lds, body, vgpr) in kernels:
        out += kernel_text(name, body, vgpr)
    return out

def k_a():
    a = Asm()
    prologue(a, 256, "ka")
    xcd_remap(a, 5)
    k_rowfft.gen_rowfft(a, "ka")
    a.label("ka_end")
    return ("ka_kernel", 256, 256, 4 * 4608, a.text(), 176)

def k_w():
    a = Asm()
    prologue(a, 320, "kw")
    a("s_mov_b32 s3, s2")
    k_colfft.gen_wprep(a, "kw")
    a.label("kw_end")
    return ("kw_kernel", 320, 256, 0, a.text(), 32)

def k_b():
    a = Asm()
    prologue(a, 257, "kb")
    a("s_mov_b32 s3, s2")
    a("s_waitcnt lgkmcnt(0)")
    k_colfft.gen_colfft(a, "kb")
    a.label("kb_end")
    return ("kb_kernel", 257, 256, 36864, a.text(), 152)

def k_e():
    a = Asm()
    prologue(a, 256, "ke")
    xcd_remap(a, 5)
    a("s_waitcnt lgkmcnt(0)")
    k_rowifft.gen_rowifft(a, "ke")
    a.label("ke_end")
    return ("ke_kernel", 256, 256, 4 * 4608, a.text(), 184)

def k_p():
    a = Asm()
    prologue(a, k_wprep.NWG_WPREP, "kp")
    a("s_mov_b32 s3, s2")
    k_wprep.gen_wprep_w(a, "kp")
    a.label("kp_end")
    return ("kp_kernel", k_wprep.NWG_WPREP, 256, 0, a.text(), 32)

def k_c():
    a = Asm()
    prologue(a, k_gemm1.NWG_GEMM1, "kc")
    a("s_mov_b32 s3, s2")
    a("s_waitcnt lgkmcnt(0)")
    nv = k_gemm1.gen_gemm1(a, "kc")
    a.label("kc_end")
    return ("kc_kernel", k_gemm1.NWG_GEMM1, 256, 65536, a.text(), nv)

def k_d():
    a = Asm()
    prologue(a, 256, "kd")
    a("s_mov_b32 s3, s2")
    a("s_waitcnt lgkmcnt(0)")
    nv = k_gemm2.gen_gemm2(a, "kd")
    a.label("kd_end")
    return ("kd_kernel", 256, 256, 65536, a.text(), nv)

def merged(name, parts, lds):
    a = Asm()
    total = sum(p[1] for p in parts)
    prologue(a, total, name)
    a("s_waitcnt lgkmcnt(0)")
    off = 0
    vg = 0
    bodies = []
    for idx, (lab, nwg, gen, remap) in enumerate(parts):
        last = idx == len(parts) - 1
        if not last:
            a("s_cmp_lt_u32 s2, %d" % (off + nwg))
            a("s_cbranch_scc1 %s_%s_start" % (name, lab))
        else:
            a("s_branch %s_%s_start" % (name, lab))
        off += nwg
    off = 0
    for idx, (lab, nwg, gen, remap) in enumerate(parts):
        a.label("%s_%s_start" % (name, lab))
        if off: a("s_sub_u32 s2, s2, %d" % off)
        if remap is None: a("s_mov_b32 s3, s2")
        else: xcd_remap(a, remap)
        v = gen(a)
        vg = max(vg, v)
        a("s_endpgm")
        off += nwg
    a.label("%s_end" % name)
    return (name + "_kernel", total, 256, lds, a.text(), vg)

def g_ka(a): k_rowfft.gen_rowfft(a, "ka"); return 176
def g_kw(a): k_colfft.gen_wprep(a, "kw"); return 32
def g_kp(a): k_wprep.gen_wprep_w(a, "kp"); return 32
def g_kb(a): k_colfft.gen_colfft(a, "kb"); return 152
def g_kc(a): return k_gemm1.gen_gemm1(a, "kc")
def g_kd(a): return k_gemm2.gen_gemm2(a, "kd")
def g_ke(a): k_rowifft.gen_rowifft(a, "ke"); return 184

if __name__ == "__main__":
    if len(sys.argv) > 2 and sys.argv[2] == "split":
        ks = [k_a(), k_w(), k_p(), k_b(), k_c(), k_d(), k_e()]
    else:
        ks = [merged("l1", [("ka", 256, g_ka, 5), ("kp", k_wprep.NWG_WPREP, g_kp, None), ("kw", 320, g_kw, None)], 4 * 4608),
              merged("l2", [("kc", k_gemm1.NWG_GEMM1, g_kc, None), ("kb", 257, g_kb, None)], 65536),
              merged("l3", [("kd", 256, g_kd, None)], 65536),
              merged("l4", [("ke", 256, g_ke, 5)], 4 * 4608)]
    txt = build(ks)
    open(sys.argv[1] if len(sys.argv) > 1 else "cdna_kernels/%s.s" % NAME, "w").write(txt)
```

```python
from asmlib import *
from layout import *
from k_gemm import bf16r_pair, silu_pair, LOG2E

def gen_gemm2(a, L, P=8, fused=False):
    KSW = 28
    ACC = 16
    FR = 80
    a("v_and_b32 v1, 63, v0")
    a("v_lshrrev_b32 v2, 6, v0")
    a("s_nop 0")
    a("v_readfirstlane_b32 s8, v2")
    a("s_and_b32 s9, s3, 31")
    a("s_lshr_b32 s10, s3, 5")
    srd(a, 12, 6, WS_H, 64 * 112 * 1024)
    srd(a, 16, 6, WS_WD, 8 * 112 * 2 * 1024)
    if not fused:
        srd(a, 20, 6, WS_G, S * D * 2)
    else:
        a("s_load_dwordx2 s[36:37], s[0:1], 56")
        a("s_load_dwordx2 s[38:39], s[0:1], 64")
        a("s_waitcnt lgkmcnt(0)")
        srd(a, 20, 36, 0, S * D * 2)
        srd(a, 40, 38, 0, 256)
        srd(a, 48, 4, 0, S * D * 2)
        srd(a, 52, 6, WS_S, S * D * 2)
    a("s_mul_i32 s26, s8, %d" % KSW)
    a("s_lshl_b32 s24, s9, 1"); a("s_mul_i32 s24, s24, 112"); a("s_add_u32 s24, s24, s26"); a("s_lshl_b32 s24, s24, 10")
    a("s_add_u32 s25, s24, %d" % (112 * 1024))
    a("s_mul_i32 s27, s10, 112"); a("s_add_u32 s27, s27, s26"); a("s_lshl_b32 s27, s27, 11")
    a("s_mov_b32 s44, %s" % fhex(-LOG2E))
    a("v_lshlrev_b32 v2, 4, v1")
    slot = lambda t: FR + 16 * (t % P)
    def loads(t):
        r = slot(t)
        if t % 4 == 0:
            a("s_add_u32 s30, s24, %d" % ((t >> 2) * 4096)); a("s_add_u32 s31, s25, %d" % ((t >> 2) * 4096))
        if t % 2 == 0:
            a("s_add_u32 s32, s27, %d" % ((t >> 1) * 4096))
        a("buffer_load_dwordx4 v[%d:%d], v2, s[16:19], s32 offen offset:%d" % (r, r + 3, (t & 1) * 2048))
        a("buffer_load_dwordx4 v[%d:%d], v2, s[12:15], s30 offen offset:%d" % (r + 8, r + 11, (t & 3) * 1024))
        a("buffer_load_dwordx4 v[%d:%d], v2, s[16:19], s32 offen offset:%d" % (r + 4, r + 7, (t & 1) * 2048 + 1024))
        a("buffer_load_dwordx4 v[%d:%d], v2, s[12:15], s31 offen offset:%d" % (r + 12, r + 15, (t & 3) * 1024))
    for t in range(min(P, KSW)):
        loads(t)
    for t in range(KSW):
        inflight = min(t + P, KSW) - t - 1
        r = slot(t)
        a("s_waitcnt vmcnt(%d)" % (4 * inflight + 2))
        for (i, j) in ((0, 0), (1, 0), (0, 1), (1, 1)):
            if (i, j) == (1, 0): a("s_waitcnt vmcnt(%d)" % (4 * inflight + 1))
            if (i, j) == (0, 1): a("s_waitcnt vmcnt(%d)" % (4 * inflight))
            ac = ACC + (i * 2 + j) * 16
            w = r + 4 * i; x = r + 8 + 4 * j
            src = "0" if t == 0 else "v[%d:%d]" % (ac, ac + 15)
            a("v_mfma_f32_32x32x16_bf16 v[%d:%d], v[%d:%d], v[%d:%d], %s" % (ac, ac + 15, w, w + 3, x, x + 3, src))
        if t + P < KSW:
            loads(t + P)
        if fused and t + P == KSW:
            a("s_cmp_lg_u32 s8, 0")
            a("s_cbranch_scc1 %s_nopoll" % L)
            a("s_lshl_b32 s33, s9, 2")
            a("v_mov_b32 v3, 0")
            a.label("%s_poll" % L)
            a("buffer_load_dword v4, v3, s[40:43], s33 offen sc1")
            a("s_waitcnt vmcnt(0)")
            a("v_readfirstlane_b32 s34, v4")
            a("s_cmp_ge_u32 s34, 8")
            a("s_cbranch_scc1 %s_polled" % L)
            a("s_sleep 4")
            a("s_branch %s_poll" % L)
            a.label("%s_polled" % L)
            a("buffer_inv sc1")
            a.label("%s_nopoll" % L)
    a("s_lshl_b32 s28, s8, 14")
    a("v_add_u32 v3, s28, v2")
    a("s_nop 15"); a("s_nop 7")
    for b in range(4):
        for q in range(4):
            ac = ACC + b * 16 + q * 4
            a("ds_write_b128 v3, v[%d:%d] offset:%d" % (ac, ac + 3, (b * 4 + q) * 1024))
    a("s_waitcnt vmcnt(0) lgkmcnt(0)")
    a("s_barrier")
    a("s_lshl_b32 s28, s8, 12")
    a("v_add_u32 v3, s28, v2")
    for p in range(4):
        for q in range(4):
            a("ds_read_b128 v[%d:%d], v3 offset:%d" % (FR + p * 16 + q * 4, FR + p * 16 + q * 4 + 3, p * 16384 + q * 1024))
    a("v_and_b32 v5, 31, v1"); a("v_lshlrev_b32 v5, 10, v5")
    a("v_lshrrev_b32 v6, 5, v1"); a("v_lshlrev_b32 v6, 3, v6"); a("v_add_u32 v5, v5, v6")
    a("s_lshl_b32 s27, s9, 6"); a("s_and_b32 s28, s8, 1"); a("s_lshl_b32 s28, s28, 5"); a("s_add_u32 s27, s27, s28")
    a("s_lshl_b32 s27, s27, 10")
    a("s_lshl_b32 s28, s10, 6"); a("s_lshr_b32 s29, s8, 1"); a("s_lshl_b32 s29, s29, 5"); a("s_add_u32 s28, s28, s29")
    a("s_lshl_b32 s28, s28, 1"); a("s_add_u32 s27, s27, s28")
    if fused:
        XR, SR_ = FR + 64 + 12, FR + 64 + 20
        for q in range(4):
            a("buffer_load_dwordx2 v[%d:%d], v5, s[48:51], s27 offen offset:%d" % (XR + 2 * q, XR + 2 * q + 1, q * 16))
            a("buffer_load_dwordx2 v[%d:%d], v5, s[52:55], s27 offen offset:%d" % (SR_ + 2 * q, SR_ + 2 * q + 1, q * 16))
    a("s_waitcnt lgkmcnt(0)")
    for e in range(0, 16, 2):
        a("v_pk_add_f32 v[%d:%d], v[%d:%d], v[%d:%d]" % (FR + e, FR + e + 1, FR + e, FR + e + 1, FR + 16 + e, FR + 16 + e + 1))
    for e in range(0, 16, 2):
        a("v_pk_add_f32 v[%d:%d], v[%d:%d], v[%d:%d]" % (FR + e, FR + e + 1, FR + e, FR + e + 1, FR + 32 + e, FR + 32 + e + 1))
    for e in range(0, 16, 2):
        a("v_pk_add_f32 v[%d:%d], v[%d:%d], v[%d:%d]" % (FR + e, FR + e + 1, FR + e, FR + e + 1, FR + 48 + e, FR + 48 + e + 1))
    T = FR + 64
    XR, SR_ = T + 12, T + 20
    for q in range(4):
        for hp in range(2):
            g0, g1 = FR + 4 * q + 2 * hp, FR + 4 * q + 2 * hp + 1
            bf16r_pair(a, g0, g1, T)
            silu_pair(a, g0, g1, T, T + 1)
            a("v_cvt_pk_bf16_f32 v%d, v%d, v%d" % (T + 2 + 2 * q + hp, g0, g1))
        if not fused:
            a("buffer_store_dwordx2 v[%d:%d], v5, s[20:23], s27 offen offset:%d" % (T + 2 + 2 * q, T + 3 + 2 * q, q * 16))
    if fused:
        a("s_waitcnt vmcnt(0)")
        for q in range(4):
            for hp in range(2):
                gq = T + 2 + 2 * q + hp; sq = SR_ + 2 * q + hp; xq = XR + 2 * q + hp
                a("v_lshlrev_b32 v6, 16, v%d" % gq); a("v_and_b32 v7, 0xffff0000, v%d" % gq)
                a("v_lshlrev_b32 v8, 16, v%d" % sq); a("v_and_b32 v9, 0xffff0000, v%d" % sq)
                a("v_mul_f32 v6, v6, v8"); a("v_mul_f32 v7, v7, v9")
                a("v_cvt_pk_bf16_f32 v6, v6, v7")
                a("v_lshlrev_b32 v8, 16, v%d" % xq); a("v_and_b32 v9, 0xffff0000, v%d" % xq)
                a("v_and_b32 v7, 0xffff0000, v6"); a("v_lshlrev_b32 v6, 16, v6")
                a("v_add_f32 v6, v6, v8"); a("v_add_f32 v7, v7, v9")
                a("v_cvt_pk_bf16_f32 v%d, v6, v7" % gq)
            a("buffer_store_dwordx2 v[%d:%d], v5, s[20:23], s27 offen offset:%d" % (T + 2 + 2 * q, T + 3 + 2 * q, q * 16))
    return max(FR + 16 * P, FR + 64 + 28)
```

```python
from asmlib import *
from layout import *

def gen_rowifft(a, L, s_only=False):
    a("s_load_dwordx2 s[36:37], s[0:1], %d" % (64 if s_only else 56))
    a("v_and_b32 v1, 63, v0")
    a("v_lshrrev_b32 v2, 6, v0")
    a("s_nop 0")
    a("v_readfirstlane_b32 s8, v2")
    a("s_lshl_b32 s9, s3, 2")
    a("s_add_u32 s9, s9, s8")
    a("s_mul_i32 s10, s8, 4608")
    srd(a, 12, 4, 0, S * D * 2)
    srd(a, 16, 6, WS_S if s_only else WS_G, S * D * 2)
    srd(a, 20, 6, WS_X1T, X1T_BYTES)
    a("s_lshl_b32 s11, s9, 11")
    a("v_lshlrev_b32 v3, 4, v1")
    a("v_lshlrev_b32 v86, 14, v1")
    a("s_lshl_b32 s29, s9, 4")
    for j in range(5):
        a("s_add_u32 s32, s29, 0x%x" % (j * 64 * 16384))
        a("buffer_load_dwordx4 v[%d:%d], v86, s[20:23], s32 offen" % (152 + 4 * j, 155 + 4 * j))
    if not s_only:
        a("buffer_load_dwordx4 v[4:7], v3, s[12:15], s11 offen")
        a("buffer_load_dwordx4 v[8:11], v3, s[12:15], s11 offen offset:1024")
        a("buffer_load_dwordx4 v[176:179], v3, s[16:19], s11 offen")
        a("buffer_load_dwordx4 v[180:183], v3, s[16:19], s11 offen offset:1024")
    a("s_mov_b32 s26, %s" % fhex(math.sqrt(0.5)))
    SC = "s26"
    T1 = {q: (52 + 2 * (q - 1), 53 + 2 * (q - 1)) for q in range(1, 8)}
    T2 = {q: (66 + 2 * (q - 1), 67 + 2 * (q - 1)) for q in range(1, 8)}
    gen_twiddles(a, 1, 512, range(1, 8), T1, 12, fhex(-1.0 / 512))
    a("v_and_b32 v13, 7, v1")
    gen_twiddles(a, 13, 64, range(1, 8), T2, 12, fhex(-1.0 / 64))
    a("v_mul_u32_u24 v14, 72, v1")
    a("v_add_u32 v14, s10, v14")
    a("v_lshrrev_b32 v12, 3, v1")
    a("v_add_u32 v15, v12, v1")
    a("v_lshlrev_b32 v15, 3, v15")
    a("v_add_u32 v15, s10, v15")
    a("v_lshlrev_b32 v80, 3, v1")
    a("v_add_u32 v80, s10, v80")
    a("v_mul_u32_u24 v81, 576, v12")
    a("v_add_u32 v81, s10, v81")
    a("v_lshlrev_b32 v82, 3, v13")
    a("v_add_u32 v82, v81, v82")
    a("v_lshlrev_b32 v83, 6, v13")
    a("v_add_u32 v83, v81, v83")
    a("v_sub_u32 v84, 256, v1")
    a("v_lshlrev_b32 v84, 3, v84")
    a("v_add_u32 v84, s10, v84")
    a("s_waitcnt lgkmcnt(0)")
    srd(a, 40, 36, 0, 256 if s_only else S * D * 2)
    a("v_cmp_eq_u32 vcc, 0, v1")
    pool = Pool(104, 24)
    a("s_waitcnt vmcnt(%d)" % (0 if s_only else 4))
    for j in (0, 4):
        o = 152 + 4 * j
        a("v_cndmask_b32 v%d, v%d, 0, vcc" % (o + 1, o + 1))
        a("v_cndmask_b32 v%d, v%d, 0, vcc" % (o + 3, o + 3))
    Z = [None] * 8
    for j in range(5):
        o = 152 + 4 * j
        p = pool.alloc()
        a("v_sub_f32 v%d, v%d, v%d" % (p, o, o + 3))
        a("v_add_f32 v%d, v%d, v%d" % (p + 1, o + 1, o + 2))
        if j < 4:
            Z[j] = CV(p)
            m = pool.alloc()
            a("v_add_f32 v%d, v%d, v%d" % (m, o, o + 3))
            a("v_sub_f32 v%d, v%d, v%d" % (m + 1, o + 2, o + 1))
            a("ds_write_b64 v84, v[%d:%d] offset:%d" % (m, m + 1, 512 * (4 - j)))
            pool.release(m)
        else:
            a("ds_write_b64 v84, v[%d:%d] offset:0" % (p, p + 1))
            pool.release(p)
    for j in range(4, 8):
        p = pool.alloc(); Z[j] = CV(p)
        a("ds_read_b64 v[%d:%d], v80 offset:%d" % (p, p + 1, 512 * j))
    a("s_waitcnt lgkmcnt(0)")
    y = dft8(a, pool, Z, +1, SC)
    for u in range(8):
        a("ds_write_b64 v83, v[%d:%d] offset:%d" % (y[u]['p'], y[u]['p'] + 1, 8 * u))
    for u in range(8): pool.release(y[u]['p'])
    vals = []
    for q in range(8):
        p = pool.alloc(); vals.append(CV(p))
        a("ds_read_b64 v[%d:%d], v80 offset:%d" % (p, p + 1, 576 * q))
    a("s_waitcnt lgkmcnt(0)")
    for q in range(1, 8): vals[q] = twiddle(a, pool, vals[q], *T2[q], conj=True)
    y = dft8(a, pool, vals, +1, SC)
    for m in range(8):
        a("ds_write_b64 v82, v[%d:%d] offset:%d" % (y[m]['p'], y[m]['p'] + 1, 64 * m))
    for m in range(8): pool.release(y[m]['p'])
    vals = []
    for q in range(8):
        p = pool.alloc(); vals.append(CV(p))
        a("ds_read_b64 v[%d:%d], v80 offset:%d" % (p, p + 1, 576 * q))
    a("s_waitcnt lgkmcnt(0)")
    for q in range(1, 8): vals[q] = twiddle(a, pool, vals[q], *T1[q], conj=True)
    y = dft8(a, pool, vals, +1, SC)
    for m in range(8):
        a("ds_write_b64 v15, v[%d:%d] offset:%d" % (y[m]['p'], y[m]['p'] + 1, 576 * m))
    for m in range(8): pool.release(y[m]['p'])
    for i in range(8):
        a("ds_read_b64 v[%d:%d], v14 offset:%d" % (16 + 2 * i, 17 + 2 * i, 8 * i))
    a("v_mov_b32 v87, %s" % fhex(2.0 ** -21))
    a("s_waitcnt vmcnt(0) lgkmcnt(0)")
    if s_only:
        for (row, out) in ((0, 96), (1, 100)):
            for j in range(4):
                s0 = 16 + 4 * j + row; s1 = 18 + 4 * j + row
                a("v_mul_f32 v12, v87, v%d" % s0); a("v_mul_f32 v13, v87, v%d" % s1)
                a("v_cvt_pk_bf16_f32 v%d, v12, v13" % (out + j))
        a("buffer_store_dwordx4 v[96:99], v3, s[16:19], s11 offen sc1")
        a("buffer_store_dwordx4 v[100:103], v3, s[16:19], s11 offen offset:1024 sc1")
        a("s_waitcnt vmcnt(0)")
        a("s_barrier")
        a("s_cmp_lg_u32 s8, 0")
        a("s_cbranch_scc1 %s_sig_done" % L)
        a("s_lshr_b32 s28, s3, 3"); a("s_lshl_b32 s28, s28, 2")
        a("v_mov_b32 v12, 1"); a("v_lshlrev_b32 v13, 2, v1")
        a("v_cmp_eq_u32 vcc, 0, v1")
        a("s_and_saveexec_b64 s[30:31], vcc")
        a("buffer_atomic_add v12, v13, s[40:43], s28 offen sc1")
        a("s_waitcnt vmcnt(0)")
        a.label("%s_sig_done" % L)
        return
    for (row, xr, gr, out) in ((0, 4, 176, 96), (1, 8, 180, 100)):
        for j in range(4):
            s0 = 16 + 4 * j + row; s1 = 18 + 4 * j + row
            a("v_mul_f32 v12, v87, v%d" % s0); a("v_mul_f32 v13, v87, v%d" % s1)
            a("v_cvt_pk_bf16_f32 v12, v12, v13")
            a("v_lshlrev_b32 v88, 16, v%d" % (gr + j)); a("v_and_b32 v89, 0xffff0000, v%d" % (gr + j))
            a("v_and_b32 v13, 0xffff0000, v12"); a("v_lshlrev_b32 v12, 16, v12")
            a("v_mul_f32 v12, v12, v88"); a("v_mul_f32 v13, v13, v89")
            a("v_cvt_pk_bf16_f32 v12, v12, v13")
            a("v_lshlrev_b32 v88, 16, v%d" % (xr + j)); a("v_and_b32 v89, 0xffff0000, v%d" % (xr + j))
            a("v_and_b32 v13, 0xffff0000, v12"); a("v_lshlrev_b32 v12, 16, v12")
            a("v_add_f32 v12, v12, v88"); a("v_add_f32 v13, v13, v89")
            a("v_cvt_pk_bf16_f32 v%d, v12, v13" % (out + j))
    a("buffer_store_dwordx4 v[96:99], v3, s[40:43], s11 offen")
    a("buffer_store_dwordx4 v[100:103], v3, s[40:43], s11 offen offset:1024")
```

```python
S, D, F, DF = 2048, 512, 1792, 257
WS_XN  = 0x0000000
WS_X1T = 0x0800000
WS_WT  = 0x1000000
WS_WGU = 0x1800000
WS_WD  = 0x2000000
WS_H   = 0x2800000
WS_G   = 0x3800000
X1T_BYTES = DF * S * 8
WS_S   = 0x3a00000
```

```python
import sys, re, os
from asmlib import *
from layout import *
import k_rowfft, k_colfft, k_rowifft, k_wprep, k_gemm, k_gemm2, k_gemm1

NAME = "recurrent_scan__spectral_gfnet__swiglu_ffn__prompt"
REF = open("cdna_kernels/%s.s.ref" % NAME).read()
HEADER = "".join(l + "\n" for l in REF.split("\n") if l.startswith(";") and "@launch" not in l)

def prologue(a, nwg, L):
    a("s_load_dwordx2 s[4:5], s[0:1], 0")
    a("s_load_dwordx2 s[6:7], s[0:1], 72")
    a("s_cmp_ge_u32 s2, %d" % nwg)
    a("s_cbranch_scc1 %s_end" % L)

def xcd_remap(a, lg):
    a("s_and_b32 s3, s2, 7")
    a("s_lshl_b32 s3, s3, %d" % lg)
    a("s_lshr_b32 s45, s2, 3")
    a("s_add_u32 s3, s3, s45")

def build(kernels):
    out = HEADER
    for (name, grid, block, lds, body, vgpr) in kernels:
        out += "; @launch kernel=%s grid=(%d,1,1) block=(%d,1,1) lds=%d\n" % (name, grid, block, lds)
    out += '.amdgcn_target "amdgcn-amd-amdhsa--gfx950"\n'
    for (name, grid, block, lds, body, vgpr) in kernels:
        out += kernel_text(name, body, vgpr)
    return out

def k_a():
    a = Asm()
    prologue(a, 256, "ka")
    xcd_remap(a, 5)
    k_rowfft.gen_rowfft(a, "ka")
    a.label("ka_end")
    return ("ka_kernel", 256, 256, 4 * 4608, a.text(), 176)

def k_w():
    a = Asm()
    prologue(a, 320, "kw")
    a("s_mov_b32 s3, s2")
    k_colfft.gen_wprep(a, "kw")
    a.label("kw_end")
    return ("kw_kernel", 320, 256, 0, a.text(), 32)

def k_b():
    a = Asm()
    prologue(a, 257, "kb")
    a("s_mov_b32 s3, s2")
    a("s_waitcnt lgkmcnt(0)")
    k_colfft.gen_colfft(a, "kb")
    a.label("kb_end")
    return ("kb_kernel", 257, 256, 36864, a.text(), 152)

def k_e():
    a = Asm()
    prologue(a, 256, "ke")
    xcd_remap(a, 5)
    a("s_waitcnt lgkmcnt(0)")
    k_rowifft.gen_rowifft(a, "ke")
    a.label("ke_end")
    return ("ke_kernel", 256, 256, 4 * 4608, a.text(), 184)

def k_p():
    a = Asm()
    prologue(a, k_wprep.NWG_WPREP, "kp")
    a("s_mov_b32 s3, s2")
    k_wprep.gen_wprep_w(a, "kp")
    a.label("kp_end")
    return ("kp_kernel", k_wprep.NWG_WPREP, 256, 0, a.text(), 32)

def k_c():
    a = Asm()
    prologue(a, k_gemm1.NWG_GEMM1, "kc")
    a("s_mov_b32 s3, s2")
    a("s_waitcnt lgkmcnt(0)")
    nv = k_gemm1.gen_gemm1(a, "kc")
    a.label("kc_end")
    return ("kc_kernel", k_gemm1.NWG_GEMM1, 256, 65536, a.text(), nv)

def k_d():
    a = Asm()
    prologue(a, 256, "kd")
    a("s_mov_b32 s3, s2")
    a("s_waitcnt lgkmcnt(0)")
    nv = k_gemm2.gen_gemm2(a, "kd")
    a.label("kd_end")
    return ("kd_kernel", 256, 256, 65536, a.text(), nv)

def merged(name, parts, lds):
    a = Asm()
    total = sum(p[1] for p in parts)
    prologue(a, total, name)
    a("s_waitcnt lgkmcnt(0)")
    off = 0
    vg = 0
    bodies = []
    for idx, (lab, nwg, gen, remap) in enumerate(parts):
        last = idx == len(parts) - 1
        if not last:
            a("s_cmp_lt_u32 s2, %d" % (off + nwg))
            a("s_cbranch_scc1 %s_%s_start" % (name, lab))
        else:
            a("s_branch %s_%s_start" % (name, lab))
        off += nwg
    off = 0
    for idx, (lab, nwg, gen, remap) in enumerate(parts):
        a.label("%s_%s_start" % (name, lab))
        if off: a("s_sub_u32 s2, s2, %d" % off)
        if remap is None: a("s_mov_b32 s3, s2")
        else: xcd_remap(a, remap)
        v = gen(a)
        vg = max(vg, v)
        a("s_endpgm")
        off += nwg
    a.label("%s_end" % name)
    return (name + "_kernel", total, 256, lds, a.text(), vg)

def g_ka(a): k_rowfft.gen_rowfft(a, "ka"); return 176
def g_kw(a): k_colfft.gen_wprep(a, "kw"); return 32
def g_kp(a): k_wprep.gen_wprep_w(a, "kp"); return 32
def g_kb(a): k_colfft.gen_colfft(a, "kb"); return 152
def g_kc(a): return k_gemm1.gen_gemm1(a, "kc")
def g_kd(a): return k_gemm2.gen_gemm2(a, "kd", P=int(os.environ.get("KD_P", "8")))
def g_ke(a): k_rowifft.gen_rowifft(a, "ke"); return 184
def g_kes(a): k_rowifft.gen_rowifft(a, "ke", s_only=True); return 184
def g_kdf(a): return k_gemm2.gen_gemm2(a, "kd", P=int(os.environ.get("KD_P", "8")), fused=True)

if __name__ == "__main__":
    if len(sys.argv) > 2 and sys.argv[2] == "split":
        ks = [k_a(), k_w(), k_p(), k_b(), k_c(), k_d(), k_e()]
    else:
        ks = [merged("l1", [("ka", 256, g_ka, 5), ("kp", k_wprep.NWG_WPREP, g_kp, None), ("kw", 320, g_kw, None)], 4 * 4608),
              merged("l2", [("kc", k_gemm1.NWG_GEMM1, g_kc, None), ("kb", 257, g_kb, None)], 65536),
              merged("l3", [("ke", 256, g_kes, 5), ("kd", 256, g_kdf, None)], 65536)]
    txt = build(ks)
    open(sys.argv[1] if len(sys.argv) > 1 else "cdna_kernels/%s.s" % NAME, "w").write(txt)
```
